```python
import torch

def _softmax(x, axis=-1):
    return torch.softmax(x, dim=axis)

def _gelu(x):
    return torch.nn.functional.gelu(x, approximate='tanh')

def _silu(x):
    return torch.nn.functional.silu(x)

def _sigmoid(x):
    return torch.sigmoid(x)

def _layernorm(x, axis=-1, eps=1e-05):
    m = x.mean(dim=axis, keepdim=True)
    v = x.var(dim=axis, keepdim=True, unbiased=False)
    return (x - m) / torch.sqrt(v + eps)

def _scatter_add(tgt, idx, src, axis=0):
    return tgt.clone().index_add_(axis, idx, src)

def _segment_sum(src, seg, n):
    out = torch.zeros((n,) + src.shape[1:], dtype=src.dtype)
    return out.index_add_(0, seg, src)

def _pad(x, pw):
    flat = tuple((v for pair in reversed(pw) for v in pair))
    return torch.nn.functional.pad(x, flat)
kernel_name = 'recurrent_scan__grouped_kv_mqa__mixer_gmlp__prompt'

def setup_inputs():

    _w = lambda a: (lambda t: t.to(torch.bfloat16) if t.is_floating_point() else t)(torch.as_tensor(a))

    def _A_setup():
        B, S, D, H = (1, 2048, 640, 32)
        Dh = D // H
        return {'x': _w((lambda *s: torch.randn(*s, dtype=torch.bfloat16) * 0.05)(B, S, D)), 'wq': _w((lambda *s: torch.randn(*s, dtype=torch.bfloat16) * 0.05)(D, H * Dh)), 'wk': _w((lambda *s: torch.randn(*s, dtype=torch.bfloat16) * 0.05)(D, Dh)), 'wv': _w((lambda *s: torch.randn(*s, dtype=torch.bfloat16) * 0.05)(D, Dh)), 'wo': _w((lambda *s: torch.randn(*s, dtype=torch.bfloat16) * 0.05)(H * Dh, D))}
    _A_in = _A_setup()

    def _B_setup():
        B, S, D, F = (1, 2048, 640, 1728)
        Fh = F // 2
        return {'x': _w((lambda *s: torch.randn(*s, dtype=torch.bfloat16) * 0.05)(B, S, D)), 'w_in': _w((lambda *s: torch.randn(*s, dtype=torch.bfloat16) * 1.6)(D, 2 * Fh)), 'w_sp': _w(0.01 * (lambda *s: torch.randn(*s, dtype=torch.bfloat16) * 1.6)(S, S)), 'b_sp': _w(1.0 + 0.01 * (lambda *s: torch.randn(*s, dtype=torch.bfloat16) * 0.05)(S)), 'w_out': _w((lambda *s: torch.randn(*s, dtype=torch.bfloat16) * 0.05)(Fh, D))}
    _B_in = _B_setup()
    return {'A_x': _A_in['x'], 'A_wq': _A_in['wq'], 'A_wk': _A_in['wk'], 'A_wv': _A_in['wv'], 'A_wo': _A_in['wo'], 'B_x': _B_in['x'], 'B_w_in': _B_in['w_in'], 'B_w_sp': _B_in['w_sp'], 'B_b_sp': _B_in['b_sp'], 'B_w_out': _B_in['w_out']}

def reference(A_x, A_wq, A_wk, A_wv, A_wo, B_x, B_w_in, B_w_sp, B_b_sp, B_w_out):

    def _A_ref(x, wq, wk, wv, wo):
        B, S, D = x.shape
        H = 32
        Dh = D // H
        q = (lambda x, *d: x.permute(*d))((x @ wq).reshape(B, S, H, Dh), 0, 2, 1, 3)
        k = x @ wk
        v = x @ wv
        scores = torch.einsum('bhqd,bkd->bhqk', q, k) * Dh ** (-0.5)
        p = _softmax(scores, axis=-1)
        o = torch.einsum('bhqk,bkd->bhqd', p, v)
        return (lambda x, *d: x.permute(*d))(o, 0, 2, 1, 3).reshape(B, S, H * Dh) @ wo

    def _B_ref(x, w_in, w_sp, b_sp, w_out):
        B, S, D = x.shape
        F = w_in.shape[-1]
        Fh = F // 2
        z = _gelu(torch.einsum('bsd,df->bsf', x, w_in))
        z1 = z[..., :Fh].clone()
        z2 = _layernorm(z[..., Fh:], axis=-1)
        g = torch.einsum('ts,bsf->btf', w_sp, z2) + b_sp[None, :, None]
        return torch.einsum('bsf,fd->bsd', z1 * g, w_out)
    x = A_x
    xn = _layernorm(x, axis=-1)
    s = _A_ref(xn, A_wq, A_wk, A_wv, A_wo)
    g = _silu(_B_ref(xn, B_w_in, B_w_sp, B_b_sp, B_w_out))
    return x + s * g
```

```python
import re, os
DEBUG = bool(os.environ.get("KDEBUG"))
OFF_DBG = 0x2000000

TRANS = ("v_exp_f32", "v_log_f32", "v_rcp_f32", "v_rsq_f32", "v_sqrt_f32", "v_sin_f32", "v_cos_f32",
         "v_rcp_iflag_f32", "v_exp_f16")


def regs_of(tok):
    tok = tok.strip()
    neg = tok.lstrip("-")
    if neg.startswith("abs(") or neg.startswith("|"):
        neg = neg.replace("abs(", "").replace(")", "").replace("|", "")
    m = re.fullmatch(r"([vas])(\d+)", neg)
    if m:
        return [(m.group(1), int(m.group(2)))]
    m = re.fullmatch(r"([vas])\[(\d+):(\d+)\]", neg)
    if m:
        return [(m.group(1), i) for i in range(int(m.group(2)), int(m.group(3)) + 1)]
    if neg == "vcc":
        return [("s", "vcc")]
    if neg in ("vcc_lo", "vcc_hi"):
        return [("s", "vcc")]
    if neg == "exec":
        return [("s", "exec")]
    if neg == "m0":
        return [("s", "m0")]
    return []


class Ins:
    def __init__(self, text):
        self.text = text
        t = text.split(";")[0].strip()
        self.label = None
        self.op = None
        self.dst = []
        self.src = []
        self.srcC = []
        self.srcAB = []
        self.states = 1
        self.target = None
        if not t or t.startswith("."):
            self.kind = "dir"
            self.states = 0
            return
        if t.endswith(":"):
            self.kind = "label"
            self.label = t[:-1]
            self.states = 0
            return
        parts = t.split(None, 1)
        op = parts[0]
        self.op = op
        rest = parts[1] if len(parts) > 1 else ""
        ops = []
        depth = 0
        cur = ""
        for ch in rest:
            if ch in "[(":
                depth += 1
            if ch in "])":
                depth -= 1
            if ch == "," and depth == 0:
                ops.append(cur.strip())
                cur = ""
            else:
                cur += ch
        if cur.strip():
            ops.append(cur.strip())
        mods = ""
        if ops:
            last = ops[-1].split(None, 1)
            ops[-1] = last[0]
            mods = last[1] if len(last) > 1 else ""
        self.mods = mods
        self.ops = ops
        R = [regs_of(o) for o in ops]
        base = re.sub(r"_(e32|e64|dpp|sdwa)$", "", op)
        self.base = base
        self.dpp = op.endswith("_dpp") or "quad_perm" in mods or "row_" in mods
        if op.startswith("v_mfma") or op.startswith("v_smfmac"):
            self.kind = "mfma"
            self.dst = R[0]
            self.srcAB = R[1] + R[2]
            self.srcC = R[3]
            self.src = self.srcAB + self.srcC
            if "32x32x4_2b" in op or "32x32x4bf16" in op:
                self.passes = 16
            elif "32x32" in op:
                self.passes = 8
            elif "16x16" in op:
                self.passes = 4
            else:
                raise ValueError(op)
        elif op.startswith("v_"):
            self.kind = "valu"
            if base.startswith("v_cmp"):
                self.dst = R[0]
                self.src = sum(R[1:], [])
                if base.startswith("v_cmpx"):
                    self.dst = self.dst + [("s", "exec")]
            elif base in ("v_permlane32_swap_b32", "v_permlane16_swap_b32", "v_swap_b32"):
                self.dst = R[0] + R[1]
                self.src = R[0] + R[1]
            elif base in ("v_add_co_u32", "v_sub_co_u32", "v_addc_co_u32", "v_subb_co_u32", "v_subrev_co_u32"):
                self.dst = R[0] + R[1]
                self.src = sum(R[2:], [])
            elif base in ("v_fmac_f32", "v_dot2c_f32_bf16", "v_pk_fmac_f16"):
                self.dst = R[0]
                self.src = sum(R, [])
            elif base == "v_nop":
                pass
            else:
                self.dst = R[0]
                self.src = sum(R[1:], [])
                if base == "v_cndmask_b32" and len(ops) == 3:
                    self.src = self.src + [("s", "vcc")]
                if self.dpp:
                    self.src = self.src + R[0]
            self.trans = base in TRANS
            self.dot = base.startswith("v_dot")
        elif op.startswith("buffer_") or op.startswith("global_"):
            self.kind = "vmem"
            self.lds = " lds" in (" " + mods) or "_lds_" in op
            if op.startswith("buffer_load"):
                if self.lds:
                    self.src = sum(R, []) + [("s", "m0")]
                else:
                    self.dst = R[0]
                    self.src = sum(R[1:], [])
            elif op.startswith("buffer_store"):
                self.src = sum(R, [])
                self.data = R[0]
            elif op.startswith("buffer_atomic"):
                self.src = sum(R, [])
                if "sc0" in mods:
                    self.dst = R[0]
            elif op.startswith("global_load"):
                if self.lds:
                    self.src = sum(R, []) + [("s", "m0")]
                else:
                    self.dst = R[0]
                    self.src = sum(R[1:], [])
            elif op.startswith("global_store"):
                self.src = sum(R, [])
                self.data = R[1]
            elif op.startswith("global_atomic"):
                if "sc0" in mods:
                    self.dst = R[0]
                    self.src = sum(R[1:], [])
                else:
                    self.src = sum(R, [])
            elif op in ("buffer_inv", "buffer_wbl2"):
                pass
            else:
                raise ValueError(op)
        elif op.startswith("ds_"):
            self.kind = "ds"
            if op.startswith("ds_read") or "_rtn_" in op or op.startswith("ds_bpermute") or op.startswith("ds_swizzle") or op.startswith("ds_permute"):
                self.dst = R[0]
                self.src = sum(R[1:], [])
            else:
                self.src = sum(R, [])
        elif op.startswith("s_"):
            self.kind = "salu"
            if op == "s_nop":
                self.states = int(ops[0], 0) + 1
            elif op.startswith("s_cbranch") or op == "s_branch":
                self.target = ops[0]
                self.kind = "branch"
            elif op == "s_call_b64":
                self.target = ops[1]
                self.kind = "call"
                self.dst = R[0]
            elif op == "s_setpc_b64":
                self.kind = "ret"
                self.src = R[0]
            elif op == "s_endpgm":
                self.kind = "end"
            elif op.startswith("s_cmp") or op in ("s_waitcnt", "s_barrier", "s_sleep", "s_setprio"):
                self.src = sum(R, [])
            elif op.startswith("s_load") or op.startswith("s_memtime") or op.startswith("s_memrealtime"):
                self.dst = R[0]
                self.src = sum(R[1:], [])
            else:
                self.dst = R[0] if R else []
                self.src = sum(R[1:], [])
                if "saveexec" in op:
                    self.dst = self.dst + [("s", "exec")]
        else:
            raise ValueError("unknown op " + text)


def isv(r):
    return r[0] in ("v", "a")


def required(p, c):
    need = 0
    pd = set(p.dst)
    cs = set(c.src)
    cd = set(c.dst)
    if p.kind == "valu":
        vd = {r for r in pd if isv(r)}
        sd = {r for r in pd if r[0] == "s"}
        if c.kind == "mfma" and vd & cs:
            need = max(need, 2)
        if c.kind == "valu":
            if p.trans and not c.trans and vd & cs:
                need = max(need, 1)
            if c.base.startswith("v_permlane") and vd & cs:
                need = max(need, 2)
            if c.dpp and vd & cs:
                need = max(need, 2)
            if c.base in ("v_readlane_b32", "v_readfirstlane_b32") and vd & cs:
                need = max(need, 1)
            if sd & cs:
                need = max(need, 4 if c.base in ("v_readlane_b32", "v_writelane_b32") else 2)
            if ("s", "exec") in sd:
                if c.dpp:
                    need = max(need, 5)
                if c.base.startswith("v_permlane") or c.base in ("v_readlane_b32", "v_readfirstlane_b32", "v_writelane_b32"):
                    need = max(need, 4)
            if p.dot:
                if c.base == p.base:
                    ab = set(sum([regs_of(o) for o in c.ops[1:3]], []))
                    if vd & ab:
                        need = max(need, 3)
                elif vd & (cs | cd):
                    need = max(need, 3)
            if ("sdwa" in p.op or ("op_sel" in p.mods and not p.base.startswith("v_pk"))) and vd & (cs | cd):
                need = max(need, 1)
        if p.dot and c.kind in ("mfma", "vmem", "ds") and vd & (cs | cd):
            need = max(need, 3)
        if c.kind == "vmem" and sd & cs:
            need = max(need, 5)
        if c.kind == "mfma" and ("s", "exec") in sd:
            need = max(need, 4)
        if c.kind in ("salu", "branch") and sd & cs:
            need = max(need, 1)
    if p.kind == "mfma":
        tab = {4: (6, 8, 3), 8: (10, 12, 7), 16: (18, 20, 15)}[p.passes]
        if c.kind == "mfma":
            cc = set(c.srcC)
            if pd & cc:
                if not (list(p.dst) == list(c.srcC) and p.passes == c.passes):
                    need = max(need, tab[0])
            if pd & set(c.srcAB):
                need = max(need, tab[1])
            if pd & cd and not (pd & cc):
                if p.passes != c.passes:
                    need = max(need, tab[0])
        elif c.kind in ("valu", "vmem", "ds"):
            if pd & (cs | cd):
                need = max(need, tab[1])
            if c.kind == "valu" and set(p.srcC) & cd:
                need = max(need, tab[2])
    if p.kind == "salu" and ("s", "m0") in pd:
        if c.kind == "vmem" and getattr(c, "lds", False):
            need = max(need, 1)
    if p.kind == "vmem" and hasattr(p, "data") and ("x3" in p.op or "x4" in p.op):
        if set(p.data) & cd:
            need = max(need, 2 if c.kind in ("valu", "mfma") else 1)
    return need


MAXD = 20


def fix_hazards(lines, verbose=True, name=""):
    total = 0
    for _ in range(10000):
        ins = [Ins(l) for l in lines]
        labels = {x.label: i for i, x in enumerate(ins) if x.label}
        preds = [[] for _ in ins]
        for i, x in enumerate(ins):
            if x.kind == "end":
                continue
            if x.kind == "call":
                preds[labels[x.target]].append(i)
                for k, y in enumerate(ins):
                    if y.kind == "ret" and y.src == x.dst and i + 1 < len(ins):
                        preds[i + 1].append(k)
                continue
            if x.kind == "ret":
                continue
            if x.kind == "branch":
                if x.target in labels:
                    preds[labels[x.target]].append(i)
                if x.op != "s_branch" and i + 1 < len(ins):
                    preds[i + 1].append(i)
            elif i + 1 < len(ins):
                preds[i + 1].append(i)
        found = None
        for i, c in enumerate(ins):
            if c.kind in ("dir", "label", "end"):
                continue
            stack = [(j, 0) for j in preds[i]]
            seen = {}
            worst = 0
            who = None
            while stack:
                j, d = stack.pop()
                if j in seen and seen[j] <= d:
                    continue
                seen[j] = d
                p = ins[j]
                if p.kind not in ("dir", "label"):
                    need = required(p, c) - d
                    if need > worst:
                        worst = need
                        who = p
                nd = d + p.states
                if nd < MAXD:
                    for k in preds[j]:
                        stack.append((k, nd))
            if worst > 0:
                found = (i, worst, who)
                break
        if not found:
            break
        i, w, who = found
        if verbose:
            print(f"  [hazard {name}] +{w} before line {i}: '{lines[i].strip()}'  after '{who.text.strip()}'")
        nops = []
        while w > 0:
            k = min(w, 16)
            nops.append(f"  s_nop {k-1}")
            w -= k
        lines = lines[:i] + nops + lines[i:]
        total += 1
    return lines


class Asm:
    def __init__(self, name):
        self.name = name
        self.lines = []
        self.uid = 0

    def __call__(self, s):
        for l in s.split("\n"):
            l = l.rstrip()
            if l.strip():
                self.lines.append(l if l.strip().endswith(":") and not l.startswith(" ") else "  " + l.strip())

    def label(self, n):
        self.lines.append(f"{n}:")

    def newlabel(self, stem):
        self.uid += 1
        return f"L_{self.name}_{stem}_{self.uid}"

    def srd(self, s, base, nbytes, add=None):
        if add is None:
            self(f"s_mov_b32 s{s}, s{base}")
            self(f"s_and_b32 s{s+1}, s{base+1}, 0xffff")
        else:
            self(f"s_add_u32 s{s}, s{base}, {add}")
            self(f"s_addc_u32 s{s+1}, s{base+1}, 0")
            self(f"s_and_b32 s{s+1}, s{s+1}, 0xffff")
        self(f"s_mov_b32 s{s+2}, {nbytes}")
        self(f"s_mov_b32 s{s+3}, 0x20000")

    def rstamp(self, i):
        if DEBUG and os.environ.get("FREQ"):
            self(f"s_memrealtime s[{84+2*i}:{85+2*i}]")
            self("s_waitcnt lgkmcnt(0)")

    def stamp(self, i):
        if DEBUG and os.environ.get("FREQ") and i in (5, 6):
            return
        if DEBUG:
            self(f"{'s_memtime' if os.environ.get('KDEBUG') == '2' else 's_memrealtime'} s[{84+2*i}:{85+2*i}]")
            self("s_waitcnt lgkmcnt(0)")

    def endpgm(self, kidx, swave, wsptr=32):
        if DEBUG:
            self.stamp(7)
            self("s_mov_b64 exec, 1")
            for i in range(8):
                self(f"v_mov_b32 v{8+i}, s{84+2*i}")
            self(f"s_lshl_b32 s84, s2, 3")
            self(f"s_add_u32 s84, s84, s{swave}")
            self(f"s_lshl_b32 s84, s84, 5")
            self(f"s_add_u32 s84, s84, {OFF_DBG + kidx * 65536}")
            self("v_mov_b32 v7, 0")
            self.srd(88, wsptr, OFF_DBG + 4 * 65536)
            self("buffer_store_dwordx4 v[8:11], v7, s[88:91], s84 offen")
            self("buffer_store_dwordx4 v[12:15], v7, s[88:91], s84 offen offset:16")
        self("s_endpgm")

    def finish(self, verbose=True):
        return fix_hazards(self.lines, verbose, self.name)


def kernel_text(name, lines):
    return f".globl {name}\n.p2align 8\n.type {name},@function\n{name}:\n" + "\n".join(lines) + "\n"


def kd_text(name, nv, acc, ns=102):
    return f""".p2align 6
.amdhsa_kernel {name}
  .amdhsa_next_free_vgpr {nv}
  .amdhsa_next_free_sgpr {ns}
  .amdhsa_accum_offset {acc}
  .amdhsa_group_segment_fixed_size 0
  .amdhsa_kernarg_size 104
  .amdhsa_user_sgpr_count 2
  .amdhsa_user_sgpr_kernarg_segment_ptr 1
  .amdhsa_system_sgpr_workgroup_id_x 1
  .amdhsa_float_denorm_mode_32 3
.end_amdhsa_kernel
"""
```

```python
from asmlib import Asm
from layout import *
import math, os
AV = os.environ.get('AV', '')

SLOT = 36864
WOFF = 20480
TR_OFF = 4 * SLOT
STAT_OFF = TR_OFF + 8192
CS_OFF = STAT_OFF + 1920
LDS_A = CS_OFF + 512
NWG_A = 248

C_Q = 20 ** -0.5 * math.log2(math.e)
C1 = -2.0 * math.sqrt(2.0 / math.pi) * math.log2(math.e)
C2 = C1 * 0.044715

X, WQ, WK, WV, WO, BX, WIN, WSP = 8, 10, 12, 14, 16, 18, 20, 22
BSP, WOUT, OUT, DBG, WS = 24, 26, 28, 30, 32
sL, sRG, sCG, sWV = 34, 35, 36, 37
SRD_X, SRD_W, SRD_WS, SRD_T = 40, 44, 48, 52


def load_args(a):
    a("s_load_dwordx16 s[8:23], s[0:1], 0")
    a("s_load_dwordx8 s[24:31], s[0:1], 64")
    a("s_load_dwordx2 s[32:33], s[0:1], 96")


def gen():
    a = Asm("ka")
    a.stamp(0)
    load_args(a)
    a(f"""
    s_cmp_ge_u32 s2, {NWG_A}
    s_cbranch_scc1 L_ka_end
    v_lshrrev_b32 v1, 6, v0
    s_and_b32 s34, s2, 7
    s_lshr_b32 s35, s2, 3
    s_mul_i32 s34, s34, 31
    s_add_u32 s{sL}, s34, s35
    v_readfirstlane_b32 s{sWV}, v1
    s_cmp_ge_u32 s{sL}, 247
    s_cbranch_scc1 L_ka_end
    v_and_b32 v0, 63, v0
    s_mul_i32 s38, s{sL}, 1009
    s_lshr_b32 s38, s38, 16
    s_mul_i32 s39, s38, 65
    s_sub_u32 s39, s{sL}, s39
    s_mul_i32 s{sRG}, s39, 205
    s_lshr_b32 s{sRG}, s{sRG}, 10
    s_sub_u32 s38, s38, s{sRG}
    s_mul_i32 s38, s38, 5
    s_add_u32 s{sCG}, s38, s39
    s_sub_u32 s38, s{sL}, 195
    s_lshr_b32 s39, s38, 2
    s_and_b32 s38, s38, 3
    s_add_u32 s38, s38, 15
    s_cmp_ge_u32 s{sL}, 195
    s_cselect_b32 s{sRG}, s39, s{sRG}
    s_cselect_b32 s{sCG}, s38, s{sCG}
    s_cmp_lt_u32 s{sWV}, 4
    s_cbranch_scc1 L_ka_compute
    """)
    loader(a)
    compute(a)
    a.label("L_ka_end")
    a("s_endpgm")
    return a.finish()


def loader(a):
    sLW, sP, sSW, sCW, sXo, sWo, sSlot, sC, sT, sT2, sONE = 56, 57, 58, 59, 60, 61, 62, 63, 64, 65, 66
    sMX, sMW, sRS = 67, 68, 69
    VX = [4, 5, 6, 7, 8]
    VW = [9, 10, 11, 12]
    VS = 13
    SUM = [16 + i for i in range(5)]
    SQ = [21 + i for i in range(5)]
    D = 32
    a(f"""
    s_sub_u32 s{sLW}, s{sWV}, 4
    v_lshrrev_b32 v1, 3, v0
    v_and_b32 v2, 7, v0
    v_lshrrev_b32 v3, 4, v0
    s_lshr_b32 s{sT}, s{sLW}, 1
    s_lshl_b32 s{sP}, s{sCG}, 1
    s_add_u32 s{sP}, s{sP}, s{sT}
    s_and_b32 s{sT2}, s{sLW}, 1
    s_lshl_b32 s{sT}, s{sT2}, 2
    v_or_b32 v14, s{sT}, v3
    v_xor_b32 v14, v14, v2
    v_lshlrev_b32 v14, 4, v14
    s_mul_i32 s{sT}, s{sLW}, 40
    v_add_u32 v15, s{sT}, v1
    v_mul_u32_u24 v15, 1280, v15
    v_add_u32 v{VX[0]}, v15, v14
    v_xor_b32 v14, 64, v14
    v_add_u32 v15, v15, v14
    v_add_u32 v{VX[1]}, {10240 - 1024}, v15
    v_add_u32 v{VX[2]}, {2 * (10240 - 1024)}, v{VX[0]}
    v_add_u32 v{VX[3]}, {3 * (10240 - 1024)}, v15
    v_add_u32 v{VX[4]}, {4 * 10240}, v{VX[0]}
    s_mul_i32 s{sMX}, s{sLW}, 5120
    s_lshl_b32 s{sMW}, s{sLW}, 12
    s_add_u32 s{sMW}, s{sMW}, {WOFF}
    s_mul_i32 s{sT}, s{sRG}, {160 * 1280}
    s_sub_u32 s{sRS}, {2048 * 1280}, s{sT}
    s_waitcnt lgkmcnt(0)
    """)
    a.srd(SRD_X, X, f"s{sRS}", add=f"s{sT}")
    a(f"""
    s_cmp_eq_u32 s{sP}, 10
    s_cbranch_scc1 L_ka_ld_kv
    s_sub_u32 s{sT}, s{sP}, 11
    s_cmp_lt_u32 s{sP}, 10
    s_cselect_b32 s{sT}, s{sP}, s{sT}
    s_cselect_b32 s{SRD_W}, s{WQ}, s{WIN}
    s_cselect_b32 s{SRD_W+1}, s{WQ+1}, s{WIN+1}
    s_movk_i32 s{sSW}, 3456
    s_cselect_b32 s{sSW}, 1280, s{sSW}
    s_lshl_b32 s{sT}, s{sT}, 7
    s_add_u32 s{SRD_W}, s{SRD_W}, s{sT}
    s_addc_u32 s{SRD_W+1}, s{SRD_W+1}, 0
    s_mul_i32 s{SRD_W+2}, s{sSW}, 640
    s_sub_u32 s{SRD_W+2}, s{SRD_W+2}, s{sT}
    s_lshl_b32 s{sCW}, s{sSW}, 6
    s_lshl_b32 s{sT}, s{sT2}, 5
    v_add_u32 v15, s{sT}, v1
    v_mul_lo_u32 v15, v15, s{sSW}
    v_and_b32 v14, 1, v3
    v_lshlrev_b32 v14, 2, v14
    v_xor_b32 v14, v14, v2
    v_lshl_add_u32 v{VW[0]}, v14, 4, v15
    s_lshl_b32 s{sT}, s{sSW}, 3
    s_sub_u32 s{sT}, s{sT}, 1024
    v_add_u32 v{VW[1]}, s{sT}, v{VW[0]}
    v_add_u32 v{VW[2]}, s{sT}, v{VW[1]}
    v_add_u32 v{VW[3]}, s{sT}, v{VW[2]}
    s_branch L_ka_ld_go
    L_ka_ld_kv:
    s_cmp_eq_u32 s{sT2}, 0
    s_cselect_b32 s{SRD_W}, s{WK}, s{WV}
    s_cselect_b32 s{SRD_W+1}, s{WK+1}, s{WV+1}
    s_mov_b32 s{SRD_W+2}, 25600
    s_mov_b32 s{sCW}, 2560
    v_lshlrev_b32 v{VW[0]}, 4, v0
    v_lshlrev_b32 v{VW[1]}, 4, v0
    v_lshlrev_b32 v{VW[2]}, 4, v0
    v_lshlrev_b32 v{VW[3]}, 4, v0
    L_ka_ld_go:
    s_and_b32 s{SRD_W+1}, s{SRD_W+1}, 0xffff
    s_mov_b32 s{SRD_W+3}, 0x20000
    s_mov_b32 s{sXo}, 0
    s_mov_b32 s{sWo}, 0
    s_mov_b32 s{sSlot}, 0
    """)

    def issue():
        a(f"s_add_u32 m0, s{sSlot}, s{sMX}")
        a(f"s_add_u32 s{sT}, s{sSlot}, s{sMW}")
        for i in range(4):
            a(f"buffer_load_dwordx4 v{VX[i]}, s[{SRD_X}:{SRD_X+3}], s{sXo} offen offset:{1024*i} lds")
        a("s_add_u32 m0, m0, 4096")
        a(f"s_add_u32 s{sSlot}, s{sSlot}, {SLOT}")
        a(f"buffer_load_dwordx4 v{VX[4]}, s[{SRD_X}:{SRD_X+3}], s{sXo} offen lds")
        a(f"s_mov_b32 m0, s{sT}")
        a(f"s_add_u32 s{sXo}, s{sXo}, 128")
        for i in range(4):
            a(f"buffer_load_dwordx4 v{VW[i]}, s[{SRD_W}:{SRD_W+3}], s{sWo} offen offset:{1024*i} lds")
        a(f"s_add_u32 s{sWo}, s{sWo}, s{sCW}")

    a("L_ka_ld_pro:")
    issue()
    a(f"""
    s_cmp_lt_u32 s{sXo}, 512
    s_cbranch_scc1 L_ka_ld_pro
    s_mov_b32 s{sSlot}, 0
    """)
    a.stamp(1)
    sU, sKAP, sOP = 70, 71, 72
    a(f"""
    s_lshl_b32 s{sU}, s{sL}, 2
    s_add_u32 s{sU}, s{sU}, s{sLW}
    s_min_u32 s{sT}, s{sU}, 939
    s_mul_i32 s{sKAP}, s{sT}, 6554
    s_lshr_b32 s{sKAP}, s{sKAP}, 16
    s_mul_i32 s{sOP}, s{sKAP}, 10
    s_sub_u32 s{sOP}, s{sT}, s{sOP}
    s_sub_u32 s{sT}, s{sKAP}, 40
    s_cmp_lt_u32 s{sKAP}, 40
    s_cselect_b32 s{sT}, s{sKAP}, s{sT}
    s_cselect_b32 s{SRD_T}, s{WO}, s{WOUT}
    s_cselect_b32 s{SRD_T+1}, s{WO+1}, s{WOUT+1}
    s_mov_b32 s{SRD_T+2}, {864*1280}
    s_cselect_b32 s{SRD_T+2}, {640*1280}, s{SRD_T+2}
    s_and_b32 s{SRD_T+1}, s{SRD_T+1}, 0xffff
    s_mov_b32 s{SRD_T+3}, 0x20000
    s_mul_i32 s{sT}, s{sT}, {16*1280}
    s_lshl_b32 s{sT2}, s{sOP}, 7
    s_add_u32 s{sT}, s{sT}, s{sT2}
    v_and_b32 v14, 1, v3
    v_lshlrev_b32 v14, 2, v14
    v_xor_b32 v14, v14, v2
    v_mul_u32_u24 v15, 1280, v1
    v_lshl_add_u32 v14, v14, 4, v15
    v_add_u32 v15, {10240 - 1024}, v14
    s_lshl_b32 s{sT2}, s{sLW}, 11
    s_add_u32 m0, s{sT2}, {TR_OFF}
    s_mov_b32 s{sONE}, 0x3f803f80
    buffer_load_dwordx4 v14, s[{SRD_T}:{SRD_T+3}], s{sT} offen lds
    buffer_load_dwordx4 v15, s[{SRD_T}:{SRD_T+3}], s{sT} offen offset:1024 lds
    v_lshl_add_u32 v{VS}, v0, 4, s{sMX}
    """)
    for r in SUM + SQ:
        a(f"v_mov_b32 v{r}, 0")
    a.srd(SRD_WS, WS, WS_END)
    a(f"""
    s_mov_b32 s{sC}, 0
    s_mov_b32 s73, {SLOT}
    s_waitcnt vmcnt(29)
    s_branch L_ka_ld_bar
    L_ka_ld_loop:
    s_waitcnt vmcnt(18)
    L_ka_ld_bar:
    s_barrier
    """)
    for i in range(5 if "nostat" not in AV else 0):
        a(f"ds_read_b128 v[{D+4*i}:{D+4*i+3}], v{VS} offset:{1024*i}")
    a(f"""
    s_cmp_eq_u32 s{sC}, 0
    s_cbranch_scc1 L_ka_ld_noissue
    s_cmp_ge_u32 s{sC}, {0 if "noload" in AV else 7}
    s_cselect_b32 s{SRD_X+2}, 0, s{SRD_X+2}
    s_cselect_b32 s{SRD_W+2}, 0, s{SRD_W+2}
    """)
    issue()
    a(f"""
    s_cmp_eq_u32 s{sSlot}, {4*SLOT}
    s_cselect_b32 s{sSlot}, 0, s{sSlot}
    L_ka_ld_noissue:
    s_and_b32 s{sT}, s{sC}, 3
    s_cmp_eq_u32 s{sT}, 3
    s_cselect_b32 s{sT}, {-3*SLOT & 0xffffffff}, s73
    s_add_u32 s{sC}, s{sC}, 1
    s_waitcnt lgkmcnt(0)
    v_add_u32 v{VS}, s{sT}, v{VS}
    """)
    for j in range(4 if "nostat" not in AV else 0):
        for i in range(5):
            a(f"v_dot2_f32_bf16 v{SUM[i]}, v{D+4*i+j}, s{sONE}, v{SUM[i]}")
            a(f"v_dot2_f32_bf16 v{SQ[i]}, v{D+4*i+j}, v{D+4*i+j}, v{SQ[i]}")
    a(f"""
    s_cmp_lt_u32 s{sC}, 10
    s_cbranch_scc1 L_ka_ld_loop
    """)
    a.stamp(3)
    for sel in ("quad_perm:[1,0,3,2]", "quad_perm:[2,3,0,1]", "row_half_mirror"):
        for r in SUM + SQ:
            a(f"v_add_f32_dpp v{r}, v{r}, v{r} {sel} row_mask:0xf bank_mask:0xf")
    for k in range(1, 5):
        m = (1 << k) * 0x01010101
        a(f"s_mov_b32 s74, {m:#x}")
        a(f"s_mov_b32 s75, {m:#x}")
        a(f"v_cndmask_b32 v{SUM[0]}, v{SUM[0]}, v{SUM[k]}, s[74:75]")
        a(f"v_cndmask_b32 v{SQ[0]}, v{SQ[0]}, v{SQ[k]}, s[74:75]")
    m, q = SUM[0], SQ[0]
    a(f"""
    v_mul_f32 v{m}, {f2u(1/640):#x}, v{m}
    v_mul_f32 v{q}, {f2u(1/640):#x}, v{q}
    s_mul_i32 s{sT}, s{sLW}, 40
    v_fma_f32 v{q}, -v{m}, v{m}, v{q}
    v_lshl_add_u32 v3, v2, 3, v1
    v_max_f32 v{q}, 0, v{q}
    v_add_lshl_u32 v3, v3, s{sT}, 2
    v_cvt_pk_bf16_f32 v{q}, v{q}, v{m}
    v_add_u32 v3, {STAT_OFF}, v3
    v_and_b32 v{m}, 0xffff0000, v{q}
    v_lshlrev_b32 v{q}, 16, v{q}
    v_xor_b32 v{m}, 0x80000000, v{m}
    v_add_f32 v{q}, {f2u(1e-5):#x}, v{q}
    v_cvt_pk_bf16_f32 v{q}, v{q}, v{q}
    v_lshlrev_b32 v{q}, 16, v{q}
    v_sqrt_f32 v{q}, v{q}
    s_mov_b32 s74, 0x1f1f1f1f
    s_mov_b32 s75, 0x1f1f1f1f
    v_cvt_pk_bf16_f32 v{q}, v{q}, v{q}
    v_lshlrev_b32 v{q}, 16, v{q}
    v_rcp_f32 v17, v{q}
    s_mov_b64 exec, s[74:75]
    ds_write_b32 v3, v{m}
    ds_write_b32 v3, v{q} offset:1280
    ds_write_b32 v3, v17 offset:640
    s_mov_b64 exec, -1
    s_waitcnt vmcnt(0) lgkmcnt(0)
    s_barrier
    """)
    a(f"""
    s_cmp_ge_u32 s{sU}, 940
    s_cbranch_scc1 L_ka_ld_notr
    v_lshrrev_b32 v4, 5, v0
    v_bfe_u32 v5, v0, 2, 2
    v_lshl_add_u32 v4, v4, 2, v5
    v_lshlrev_b32 v4, 7, v4
    v_bfe_u32 v5, v0, 4, 1
    v_lshl_add_u32 v4, v5, 5, v4
    v_and_b32 v5, 3, v0
    v_lshl_add_u32 v4, v5, 3, v4
    v_bfe_u32 v5, v0, 3, 1
    v_lshl_add_u32 v4, v5, 6, v4
    s_lshl_b32 s{sT2}, s{sLW}, 11
    s_add_u32 s{sT2}, s{sT2}, {TR_OFF}
    v_add_u32 v4, s{sT2}, v4
    v_xor_b32 v5, 64, v4
    ds_read_b64_tr_b16 v[32:33], v4
    ds_read_b64_tr_b16 v[34:35], v4 offset:1024
    ds_read_b64_tr_b16 v[36:37], v5
    ds_read_b64_tr_b16 v[38:39], v5 offset:1024
    s_mul_i32 s{sT}, s{sOP}, {2*94}
    s_add_u32 s{sT}, s{sT}, s{sKAP}
    s_lshl_b32 s{sT}, s{sT}, 10
    s_add_u32 s{sT}, s{sT}, {OFF_WT}
    s_add_u32 s{sT2}, s{sT}, {94*1024}
    v_lshlrev_b32 v6, 4, v0
    s_waitcnt lgkmcnt(2)
    buffer_store_dwordx4 v[32:35], v6, s[{SRD_WS}:{SRD_WS+3}], s{sT} offen
    s_waitcnt lgkmcnt(0)
    buffer_store_dwordx4 v[36:39], v6, s[{SRD_WS}:{SRD_WS+3}], s{sT2} offen
    L_ka_ld_notr:
    s_cmp_ge_u32 s{sU}, 36
    s_cbranch_scc1 L_ka_fin
    v_lshlrev_b32 v6, 4, v0
    v_mov_b32 v40, 0
    v_mov_b32 v41, 0
    v_mov_b32 v42, 0
    v_mov_b32 v43, 0
    s_lshl_b32 s{sT}, s{sU}, 10
    s_add_u32 s{sT}, s{sT}, {OFF_CNT}
    buffer_store_dwordx4 v[40:43], v6, s[{SRD_WS}:{SRD_WS+3}], s{sT} offen
    s_branch L_ka_fin
    """)


ACC = 128
T = 16
E = 32
CS = 48
NM, RI, SD = 112, 117, 122


def compute(a):
    sP, sB, sTY, sBLK, sC, sT, sT2, sONE, sO1, sO2, sNRB = 56, 57, 58, 59, 60, 61, 62, 63, 64, 65, 66
    XA = [2, 3, 4, 5]
    WA = 6
    CSA = [7, 8]
    F = [(64, 68), (88, 92)]
    a("L_ka_compute:")
    a(f"""
    s_lshr_b32 s{sT}, s{sWV}, 1
    s_and_b32 s{sB}, s{sWV}, 1
    s_lshl_b32 s{sP}, s{sCG}, 1
    s_add_u32 s{sP}, s{sP}, s{sT}
    v_lshrrev_b32 v1, 5, v0
    v_and_b32 v9, 31, v0
    v_bfe_u32 v10, v0, 1, 3
    v_xor_b32 v10, v10, v1
    v_lshlrev_b32 v10, 4, v10
    v_lshl_add_u32 v{XA[0]}, v9, 7, v10
    v_xor_b32 v{XA[1]}, 32, v{XA[0]}
    v_xor_b32 v{XA[2]}, 64, v{XA[0]}
    v_xor_b32 v{XA[3]}, 96, v{XA[0]}
    v_bfe_u32 v10, v0, 2, 2
    v_lshl_add_u32 v10, v1, 3, v10
    v_bfe_u32 v11, v0, 4, 1
    v_lshlrev_b32 v11, 5, v11
    v_and_b32 v12, 3, v0
    v_lshl_add_u32 v11, v12, 3, v11
    s_lshl_b32 s{sT}, s{sT}, 13
    s_add_u32 s{sT}, s{sT}, {WOFF}
    v_mov_b32 v{CSA[0]}, 0
    v_mov_b32 v{CSA[1]}, 0
    s_mov_b32 s{sONE}, 0x3f803f80
    s_mov_b32 s{sC}, 0
    s_mov_b32 s73, {SLOT}
    """)
    for i in range(80):
        a(f"v_mov_b32 v{ACC+i}, 0")
    a(f"""
    s_waitcnt lgkmcnt(0)
    s_lshl_b32 s{sBLK}, s{sP}, 1
    s_add_u32 s{sBLK}, s{sBLK}, s{sB}
    s_cmp_eq_u32 s{sP}, 10
    s_cbranch_scc1 L_ka_c_kv
    v_bfe_u32 v12, v0, 3, 1
    v_xor_b32 v12, s{sB}, v12
    v_lshl_add_u32 v11, v12, 6, v11
    v_lshl_add_u32 v{WA}, v10, 7, v11
    v_add_u32 v{WA}, s{sT}, v{WA}
    """)

    def reads(f, kp, sk, sr):
        w, x = F[f]
        r = [f"ds_read_b64_tr_b16 v[{w}:{w+1}], v{WA} offset:{kp*sk}",
             f"ds_read_b64_tr_b16 v[{w+2}:{w+3}], v{WA} offset:{kp*sk+sr}"]
        for rb in range(5):
            r.append(f"ds_read_b128 v[{x+4*rb}:{x+4*rb+3}], v{XA[kp]} offset:{4096*rb}")
        return r

    def mainloop(tag, sk, sr):
        a.stamp(1)
        a("s_barrier")
        a.stamp(2)
        a.rstamp(5)
        for r in reads(0, 0, sk, sr):
            a(r)
        a(f"L_ka_c_loop{tag}:")
        for kp in range(4):
            f = kp & 1
            w, x = F[f]
            nxt = reads(f ^ 1, (kp + 1) & 3, sk, sr)
            mf = [f"v_mfma_f32_32x32x16_bf16 v[{ACC+16*rb}:{ACC+16*rb+15}], v[{w}:{w+3}], v[{x+4*rb}:{x+4*rb+3}], v[{ACC+16*rb}:{ACC+16*rb+15}]" for rb in range(5)]
            dots = [f"v_dot2_f32_bf16 v{CSA[j&1]}, v{w+j}, s{sONE}, v{CSA[j&1]}" for j in range(4)]
            if kp == 3:
                a(f"""
                s_and_b32 s{sT}, s{sC}, 3
                s_cmp_eq_u32 s{sT}, 3
                s_cselect_b32 s{sT}, {-3*SLOT & 0xffffffff}, s73
                s_add_u32 s{sC}, s{sC}, 1
                v_add_u32 v{WA}, s{sT}, v{WA}
                v_add_u32 v{XA[0]}, s{sT}, v{XA[0]}
                v_add_u32 v{XA[1]}, s{sT}, v{XA[1]}
                v_add_u32 v{XA[2]}, s{sT}, v{XA[2]}
                s_waitcnt lgkmcnt(0)
                v_add_u32 v{XA[3]}, s{sT}, v{XA[3]}
                s_barrier
                """)
                waits = [None] * 5
            else:
                waits = [4, 6, 8, 8, 7]
            plan = [nxt[0:3], nxt[3:6], nxt[6:7] + dots[0:2], dots[2:4], []]
            if "nodot" in AV: plan = [[x for x in p if "dot2" not in x] for p in plan]
            if "nox" in AV: plan = [[x for x in p if "b128" not in x] for p in plan]
            if "now" in AV: plan = [[x for x in p if "_tr_" not in x] for p in plan]
            if "nomf" in AV: mf = ["s_nop 0"] * 5
            for rb in range(5):
                if waits[rb] is not None:
                    a(f"s_waitcnt lgkmcnt({waits[rb]})")
                a(mf[rb])
                for r in plan[rb]:
                    a(r)
        a(f"""
        s_cmp_lt_u32 s{sC}, 10
        s_cbranch_scc1 L_ka_c_loop{tag}
        """)

    mainloop("n", 2048, 512)
    a(f"""
    s_sub_u32 s{sT}, s{sBLK}, 22
    s_sub_u32 s{sT2}, s{sBLK}, {22+27}
    s_cmp_lt_u32 s{sT}, 27
    s_cselect_b32 s{sTY}, 3, 4
    s_cselect_b32 s{sT}, s{sT}, s{sT2}
    s_cmp_lt_u32 s{sP}, 10
    s_cselect_b32 s{sTY}, 0, s{sTY}
    s_cselect_b32 s{sBLK}, s{sBLK}, s{sT}
    s_branch L_ka_c_epi
    L_ka_c_kv:
    v_mul_u32_u24 v10, 40, v10
    s_lshl_b32 s{sT2}, s{sB}, 12
    s_add_u32 s{sT}, s{sT}, s{sT2}
    v_add3_u32 v{WA}, v10, v11, s{sT}
    """)
    mainloop("k", 640, 160)
    a(f"s_add_u32 s{sTY}, s{sB}, 1")
    a("L_ka_c_epi:")
    a.stamp(3)
    a.rstamp(6)
    a.srd(SRD_WS, WS, WS_END)
    a(f"""
    v_add_f32 v{CSA[0]}, v{CSA[0]}, v{CSA[1]}
    s_lshl_b32 s{sT}, s{sWV}, 7
    s_add_u32 s{sT}, s{sT}, {CS_OFF}
    v_mov_b32 v{CSA[1]}, v{CSA[0]}
    v_lshl_add_u32 v10, v9, 2, s{sT}
    v_lshl_add_u32 v11, v1, 4, s{sT}
    v_permlane32_swap_b32 v{CSA[0]}, v{CSA[1]}
    v_lshlrev_b32 v12, 2, v9
    v_add_u32 v12, {STAT_OFF}, v12
    v_add_f32 v{CSA[0]}, v{CSA[0]}, v{CSA[1]}
    s_waitcnt lgkmcnt(0)
    ds_write_b32 v10, v{CSA[0]}
    """)
    for rb in range(5):
        a(f"ds_read_b32 v{NM+rb}, v12 offset:{128*rb}")
        a(f"ds_read_b32 v{RI+rb}, v12 offset:{128*rb+640}")
        a(f"ds_read_b32 v{SD+rb}, v12 offset:{128*rb+1280}")
    for q in range(4):
        a(f"ds_read_b128 v[{CS+4*q}:{CS+4*q+3}], v11 offset:{32*q}")
    a(f"""
    v_lshlrev_b32 v13, 4, v0
    v_lshlrev_b32 v14, 3, v0
    v_lshlrev_b32 v15, 3, v9
    s_mul_i32 s{sT}, s{sRG}, 5
    s_cmp_eq_u32 s{sRG}, 12
    s_cselect_b32 s{sNRB}, 4, 5
    s_cmp_ge_u32 s{sTY}, 3
    s_cbranch_scc1 L_ka_e_z
    s_cmp_eq_u32 s{sTY}, 0
    s_cbranch_scc1 L_ka_e_q
    s_mul_i32 s{sO1}, s{sT}, {KV_REC}
    s_add_u32 s{sO1}, s{sO1}, {OFF_KV}
    s_branch L_ka_e_go
    L_ka_e_q:
    s_mul_i32 s{sO1}, s{sT}, 160
    s_lshl_b32 s{sT2}, s{sBLK}, 3
    s_add_u32 s{sO1}, s{sO1}, s{sT2}
    s_lshl_b32 s{sO1}, s{sO1}, 8
    s_branch L_ka_e_go
    L_ka_e_z:
    s_mul_i32 s{sO1}, s{sT}, 27
    s_add_u32 s{sO1}, s{sO1}, s{sBLK}
    s_lshl_b32 s{sO1}, s{sO1}, 11
    s_cmp_eq_u32 s{sTY}, 3
    s_mov_b32 s{sT2}, {OFF_ZR}
    s_cselect_b32 s{sT2}, {OFF_Z1}, s{sT2}
    s_add_u32 s{sO1}, s{sO1}, s{sT2}
    s_lshl_b32 s{sO2}, s{sBLK}, 6
    s_add_u32 s{sO2}, s{sO2}, s{sT}
    s_lshl_b32 s{sO2}, s{sO2}, 8
    s_add_u32 s{sO2}, s{sO2}, {OFF_ST}
    L_ka_e_go:
    s_waitcnt lgkmcnt(0)
    """)
    for rb in range(5):
        if rb == 4:
            a(f"s_cmp_eq_u32 s{sNRB}, 4")
            a("s_cbranch_scc1 L_ka_fin")
        if rb < 2:
            a.stamp(4 + rb)
        nm = NM + rb
        pair, hi = (nm, 0) if nm % 2 == 0 else (nm - 1, 1)
        for j in range(8):
            a(f"v_pk_fma_f32 v[{T+2*j}:{T+2*j+1}], v[{CS+2*j}:{CS+2*j+1}], v[{pair}:{pair+1}], v[{ACC+16*rb+2*j}:{ACC+16*rb+2*j+1}] op_sel:[0,{hi},0] op_sel_hi:[1,{hi},1]")
        a(f"v_mov_b32 v2, v{RI+rb}")
        a(f"v_mov_b32 v4, v{SD+rb}")
        a("s_call_b64 s[70:71], L_ka_body")
    a("L_ka_fin:")
    a.endpgm(0, sWV)
    a(f"""
    L_ka_body:
    s_cmp_ge_u32 s{sTY}, 3
    s_cbranch_scc0 L_ka_b_lin
    v_mul_f32 v6, {f2u(C1):#x}, v2
    v_mul_f32 v3, v2, v2
    v_mul_f32 v7, {f2u(C2):#x}, v2
    """)
    for j in range(8):
        a(f"v_pk_mul_f32 v[{E+2*j}:{E+2*j+1}], v[{T+2*j}:{T+2*j+1}], v[{T+2*j}:{T+2*j+1}]")
        if j == 0:
            a("v_mul_f32 v7, v7, v3")
    for j in range(8):
        a(f"v_pk_fma_f32 v[{E+2*j}:{E+2*j+1}], v[{E+2*j}:{E+2*j+1}], v[6:7], v[6:7] op_sel:[0,1,0] op_sel_hi:[1,1,0]")
    for j in range(8):
        a(f"v_pk_mul_f32 v[{E+2*j}:{E+2*j+1}], v[{E+2*j}:{E+2*j+1}], v[{T+2*j}:{T+2*j+1}]")
    for j in range(16):
        a(f"v_exp_f32 v{E+j}, v{E+j}")
    for j in range(8):
        a(f"v_pk_fma_f32 v[{E+2*j}:{E+2*j+1}], v[{E+2*j}:{E+2*j+1}], v[4:5], v[4:5] op_sel_hi:[1,0,0]")
    for j in range(16):
        a(f"v_rcp_f32 v{E+j}, v{E+j}")
    for j in range(8):
        a(f"v_pk_mul_f32 v[{E+2*j}:{E+2*j+1}], v[{E+2*j}:{E+2*j+1}], v[{T+2*j}:{T+2*j+1}]")
    P = 64
    for j in range(8):
        a(f"v_cvt_pk_bf16_f32 v{P+j}, v{E+2*j}, v{E+2*j+1}")
    a(f"""
    buffer_store_dwordx4 v[{P}:{P+3}], v13, s[{SRD_WS}:{SRD_WS+3}], s{sO1} offen
    buffer_store_dwordx4 v[{P+4}:{P+7}], v13, s[{SRD_WS}:{SRD_WS+3}], s{sO1} offen offset:1024
    s_add_u32 s{sO1}, s{sO1}, {27*2048}
    s_cmp_eq_u32 s{sTY}, 3
    s_cbranch_scc1 L_ka_b_ret
    v_dot2_f32_bf16 v72, v{P}, s{sONE}, 0
    v_dot2_f32_bf16 v73, v{P}, v{P}, 0
    """)
    for j in range(1, 8):
        a(f"v_dot2_f32_bf16 v72, v{P+j}, s{sONE}, v72")
        a(f"v_dot2_f32_bf16 v73, v{P+j}, v{P+j}, v73")
    a(f"""
    v_mov_b32 v74, v72
    v_mov_b32 v75, v73
    s_nop 0
    v_permlane32_swap_b32 v72, v74
    v_permlane32_swap_b32 v73, v75
    v_pk_add_f32 v[72:73], v[72:73], v[74:75]
    buffer_store_dwordx2 v[72:73], v15, s[{SRD_WS}:{SRD_WS+3}], s{sO2} offen
    s_add_u32 s{sO2}, s{sO2}, 256
    L_ka_b_ret:
    s_setpc_b64 s[70:71]
    L_ka_b_lin:
    s_cmp_eq_u32 s{sTY}, 0
    s_cselect_b32 s{sT}, {f2u(C_Q):#x}, 1.0
    v_mul_f32 v2, s{sT}, v2
    """)
    for j in range(8):
        a(f"v_pk_mul_f32 v[{E+2*j}:{E+2*j+1}], v[{T+2*j}:{T+2*j+1}], v[2:3] op_sel_hi:[1,0]")
    for j in range(8):
        a(f"v_cvt_pk_bf16_f32 v{P+j}, v{E+2*j}, v{E+2*j+1}")
    a(f"""
    s_cmp_eq_u32 s{sTY}, 0
    s_cbranch_scc0 L_ka_b_kv
    """)
    for q in range(4):
        a(f"buffer_store_dwordx2 v[{P+2*q}:{P+2*q+1}], v14, s[{SRD_WS}:{SRD_WS+3}], s{sO1} offen offset:{512*q}")
    a(f"""
    s_add_u32 s{sO1}, s{sO1}, {160*256}
    s_setpc_b64 s[70:71]
    L_ka_b_kv:
    s_cmp_eq_u32 s{sTY}, 1
    s_cbranch_scc0 L_ka_b_v
    s_mov_b32 exec_lo, 0
    v_mov_b32 v{P+4}, s{sONE}
    v_mov_b32 v{P+5}, 0x3f80
    s_mov_b32 exec_lo, -1
    buffer_store_dwordx4 v[{P}:{P+3}], v13, s[{SRD_WS}:{SRD_WS+3}], s{sO1} offen
    buffer_store_dwordx2 v[{P+4}:{P+5}], v14, s[{SRD_WS}:{SRD_WS+3}], s{sO1} offen offset:3072
    s_add_u32 s{sO1}, s{sO1}, {KV_REC}
    s_setpc_b64 s[70:71]
    L_ka_b_v:
    v_lshlrev_b32 v72, 6, v9
    v_lshl_add_u32 v72, v1, 3, v72
    v_bfe_u32 v73, v0, 2, 2
    v_lshl_add_u32 v73, v1, 2, v73
    v_lshlrev_b32 v73, 6, v73
    v_bfe_u32 v74, v0, 4, 1
    v_lshl_add_u32 v73, v74, 5, v73
    v_and_b32 v74, 3, v0
    v_lshl_add_u32 v73, v74, 3, v73
    ds_write_b64 v72, v[{P}:{P+1}]
    ds_write_b64 v72, v[{P+2}:{P+3}] offset:16
    ds_write_b64 v72, v[{P+4}:{P+5}] offset:32
    ds_write_b64 v72, v[{P+6}:{P+7}] offset:48
    s_waitcnt lgkmcnt(0)
    ds_read_b64_tr_b16 v[76:77], v73
    ds_read_b64_tr_b16 v[78:79], v73 offset:512
    ds_read_b64_tr_b16 v[80:81], v73 offset:1024
    ds_read_b64_tr_b16 v[82:83], v73 offset:1536
    s_mov_b32 s72, 0x100000
    s_mov_b32 s73, 0x100000
    s_waitcnt lgkmcnt(0)
    s_mov_b64 exec, s[72:73]
    """)
    for j in range(8):
        a(f"v_mov_b32 v{76+j}, s{sONE}")
    if "vgarb" not in AV:
        a("s_mov_b32 exec_lo, 0xffe00000")
        a("s_mov_b32 exec_hi, 0xffe00000")
        for j in range(8):
            a(f"v_mov_b32 v{76+j}, 0")
    a(f"""
    s_mov_b64 exec, -1
    buffer_store_dwordx4 v[76:79], v13, s[{SRD_WS}:{SRD_WS+3}], s{sO1} offen offset:1024
    buffer_store_dwordx4 v[80:83], v13, s[{SRD_WS}:{SRD_WS+3}], s{sO1} offen offset:2048
    s_add_u32 s{sO1}, s{sO1}, {KV_REC}
    s_setpc_b64 s[70:71]
    """)


if __name__ == "__main__":
    for L in range(247):
        st = (L * 1009) >> 16
        r = L - 65 * st
        rg = (r * 205) >> 10
        cg = (st - rg) * 5 + r
        if L >= 195:
            rg, cg = (L - 195) >> 2, 15 + ((L - 195) & 3)
        assert 0 <= rg < 13 and 0 <= cg < 19
    for u in range(988):
        assert (u * 6554) >> 16 == u // 10
    l = gen()
    print(len(l), "lines")
```

```python
from asmlib import Asm
import os
from layout import *
from ka import load_args, X, WQ, WK, WV, WO, BX, WIN, WSP, BSP, WOUT, OUT, DBG, WS

MISC = 131072
STX = MISC + 256
NSC = MISC + 4096
LDS_B = NSC + 16384
W_H1, W_H2, W_H4, W_H5, W_AT, W_H3 = 0, 4, 8, 12, 16, 24

sI, sJ, sWV, sFB0, sNB = 34, 35, 36, 37, 38
SRD_WS, SRD_W, SRD_Z, SRD_S = 40, 44, 48, 52
VSY = 120
VT0, VT1 = 121, 122
SPIN = 80


def arrive(a, word, val=None, rtn=None):
    if os.environ.get("ASAFE"):
        a("s_waitcnt lgkmcnt(0)")
    a("s_mov_b64 exec, 1")
    if val is None:
        a(f"v_mov_b32 v{VT0}, 1")
        val = VT0
    if rtn is None:
        a(f"ds_add_u32 v{VSY}, v{val} offset:{word}")
    else:
        a(f"ds_add_rtn_u32 v{rtn}, v{VSY}, v{val} offset:{word}")
    a("s_mov_b64 exec, -1")


def waitw(a, word, target, sT, mask=None):
    l = a.newlabel("w")
    a(f"s_mov_b32 s{SPIN}, 0x80000")
    a(f"{l}:")
    a(f"ds_read_b32 v{VT1}, v{VSY} offset:{word}")
    a("s_waitcnt lgkmcnt(0)")
    a(f"v_readfirstlane_b32 s{sT}, v{VT1}")
    if mask is not None:
        a(f"s_and_b32 s{sT+1}, s{sT}, {mask}")
        a(f"s_cmp_ge_u32 s{sT+1}, {target}")
    else:
        a(f"s_cmp_ge_u32 s{sT}, {target}")
    a(f"s_cbranch_scc1 {l}_d")
    a("s_sleep 1")
    a(f"s_sub_u32 s{SPIN}, s{SPIN}, 1")
    a(f"s_cbranch_scc0 {l}")
    a(f"{l}_d:")


def gen():
    a = Asm("kb")
    a.stamp(0)
    load_args(a)
    a(f"""
    s_cmp_ge_u32 s2, 256
    s_cbranch_scc1 L_kb_end
    v_lshrrev_b32 v1, 6, v0
    s_and_b32 s{sI}, s2, 7
    s_lshl_b32 s{sI}, s{sI}, 2
    s_bfe_u32 s39, s2, 0x20003
    s_add_u32 s{sI}, s{sI}, s39
    v_readfirstlane_b32 s{sWV}, v1
    s_lshr_b32 s{sJ}, s2, 5
    s_min_u32 s39, s{sJ}, 3
    s_mul_i32 s{sFB0}, s{sJ}, 3
    s_add_u32 s{sFB0}, s{sFB0}, s39
    s_cmp_lt_u32 s{sJ}, 3
    s_cselect_b32 s{sNB}, 4, 3
    v_and_b32 v0, 63, v0
    v_mov_b32 v{VSY}, {MISC}
    s_cmp_ge_u32 s{sWV}, 4
    s_cbranch_scc1 L_kb_helper
    """)
    attention(a)
    helper(a)
    a.label("L_kb_end")
    a("s_endpgm")
    return a.finish()


def Q1(n): return f"v[{6*n}:{6*n+3}]"
def Q2(n): return f"v[{6*n+4}:{6*n+5}]"
KV = [dict(k1=48, k2=52, v=54), dict(k1=62, k2=66, v=68)]
S = [80, 96]
V16, V8 = 76, 77
VH, VQ = 78, 79
VO = 112


def attention(a):
    sQ, sT, sT2, sKV, sC, sPASS, sKV0 = 56, 57, 58, 60, 61, 62, 63
    ws = f"s[{SRD_WS}:{SRD_WS+3}]"
    a(f"""
    v_lshlrev_b32 v{V16}, 4, v0
    v_lshlrev_b32 v{V8}, 3, v0
    v_lshrrev_b32 v{VH}, 5, v0
    v_and_b32 v{VQ}, 31, v0
    s_mul_i32 s{sQ}, s{sI}, 320
    s_mul_i32 s{sT}, s{sJ}, 20
    s_add_u32 s{sQ}, s{sQ}, s{sT}
    s_lshl_b32 s{sQ}, s{sQ}, 8
    s_mul_i32 s{sKV0}, s{sWV}, {16*KV_REC}
    s_add_u32 s{sKV0}, s{sKV0}, {OFF_KV}
    s_mov_b32 s{sPASS}, 0
    s_add_u32 s66, s{sKV0}, {16*KV_REC}
    s_bfe_u32 s{sT}, s2, 0x40003
    s_mul_i32 s67, s{sT}, {KV_REC if "norot" not in os.environ.get("ATV", "") else 0}
    s_add_u32 s67, s67, s{sKV0}
    """)
    for n in range(8):
        a(f"v_mov_b32 v{6*n+4}, 0") if n else None
        a(f"v_mov_b32 v{6*n+5}, 0") if n else None
    a("v_mov_b32 v4, 0\nv_mov_b32 v5, 0")
    a("s_waitcnt lgkmcnt(0)")
    a.srd(SRD_WS, WS, WS_END)

    def kvload(buf, k):
        b = KV[buf]
        return [f"buffer_load_dwordx4 v[{b['k1']}:{b['k1']+3}], v{V16}, {ws}, s{sKV} offen",
                f"buffer_load_dwordx2 v[{b['k2']}:{b['k2']+1}], v{V8}, {ws}, s{sKV} offen offset:3072",
                f"buffer_load_dwordx4 v[{b['v']}:{b['v']+3}], v{V16}, {ws}, s{sKV} offen offset:1024",
                f"buffer_load_dwordx4 v[{b['v']+4}:{b['v']+7}], v{V16}, {ws}, s{sKV} offen offset:2048"][k]

    for n in range(8):
        qb, hd = n >> 2, n & 3
        if n:
            a(f"s_add_u32 s{sQ}, s{sQ}, {1280 if hd else 40960 - 3*1280}")
        a(f"buffer_load_dwordx2 v[{6*n}:{6*n+1}], v{V8}, {ws}, s{sQ} offen")
        a(f"buffer_load_dwordx2 v[{6*n+2}:{6*n+3}], v{V8}, {ws}, s{sQ} offen offset:512")
        a("s_mov_b32 exec_hi, 0")
        a(f"buffer_load_dwordx2 v[{6*n+4}:{6*n+5}], v{V8}, {ws}, s{sQ} offen offset:1024")
        a("s_mov_b32 exec_hi, -1")
    a(f"""
    v_mov_b32 v{VT0}, 0
    v_lshl_add_u32 v{VT1}, v{VQ}, 2, v{VSY}
    ds_write_b32 v{VT1}, v{VT0}
    """)
    a(f"""
    s_lshr_b32 s{sT}, s{sWV}, 1
    s_lshl_b32 s{sT2}, s{sI}, 1
    s_add_u32 s{sT}, s{sT}, s{sT2}
    s_mul_i32 s64, s{sT}, 40960
    s_add_u32 s64, s64, {OFF_OF}
    s_and_b32 s{sT}, s{sWV}, 1
    s_mul_i32 s{sT}, s{sT}, 10
    s_mul_i32 s{sT2}, s{sJ}, 20
    s_add_u32 s{sT}, s{sT}, s{sT2}
    v_add_u32 v{S[0]}, s{sT}, v{VH}
    """)
    for t in range(2):
        for q in range(3):
            r = VO + 3*t + q
            g = S[0] + 1
            a(f"""
            v_add_u32 v{g}, {5*t + 2*q}, v{S[0]}
            v_lshrrev_b32 v{g+1}, 2, v{g}
            v_lshlrev_b32 v{r}, 10, v{g+1}
            v_and_b32 v{g+1}, 1, v{g}
            v_lshl_add_u32 v{r}, v{g+1}, 9, v{r}
            v_bfe_u32 v{g+1}, v{g}, 1, 1
            v_lshl_add_u32 v{r}, v{g+1}, 3, v{r}
            v_lshl_add_u32 v{r}, v{VQ}, 4, v{r}
            """)
    a("s_waitcnt lgkmcnt(0)\ns_barrier")
    a.stamp(1)
    a("L_kb_at_start:")
    a(f"s_mov_b32 s{sKV}, s67")
    for k in range(4):
        a(kvload(0, k))
    kvnext = [f"s_add_u32 s{sKV}, s{sKV}, {KV_REC}", f"s_cmp_eq_u32 s{sKV}, s66", f"s_cselect_b32 s{sKV}, s{sKV0}, s{sKV}"]
    for x in kvnext:
        a(x)
    for i in range(8):
        a(f"v_mov_b32 v{KV[1]['v']+i}, 0")
    for i in range(128):
        a(f"v_accvgpr_write_b32 a{i}, 0")
    for i in range(8):
        a(f"v_mov_b32 v{S[1]+i}, 0")
    a(f"s_mov_b32 s{sC}, 0")
    a("s_waitcnt vmcnt(0)")

    def qk(n, buf, s):
        b = KV[buf]
        return [f"v_mfma_f32_32x32x16_bf16 v[{s}:{s+15}], v[{b['k1']}:{b['k1']+3}], {Q1(n)}, 0",
                f"v_mfma_f32_32x32x8_bf16 v[{s}:{s+15}], v[{b['k2']}:{b['k2']+1}], {Q2(n)}, v[{s}:{s+15}]"]

    def pv(n, buf, s):
        b = KV[buf]
        return [f"v_mfma_f32_32x32x16_bf16 a[{16*n}:{16*n+15}], v[{b['v']}:{b['v']+3}], v[{s}:{s+3}], a[{16*n}:{16*n+15}]",
                f"v_mfma_f32_32x32x16_bf16 a[{16*n}:{16*n+15}], v[{b['v']+4}:{b['v']+7}], v[{s+4}:{s+7}], a[{16*n}:{16*n+15}]"]

    for m in qk(0, 0, S[0]):
        a(m)
    a.stamp(2)
    a.rstamp(5)
    a("s_nop 11")
    a(".p2align 3")
    a("L_kb_at_loop:")
    for tl in range(2):
        for n in range(8):
            cur, oth = S[n & 1], S[(n & 1) ^ 1]
            p = pv((n - 1) & 7, tl if n else tl ^ 1, oth)
            q = qk((n + 1) & 7, tl if n < 7 else tl ^ 1, oth)
            e = [f"v_exp_f32 v{cur+i}, v{cur+i}" for i in range(16)]
            c = [f"v_cvt_pk_bf16_f32 v{cur+i}, v{cur+2*i}, v{cur+2*i+1}" for i in range(8)]
            seq = ["s_waitcnt vmcnt(0)"] if n == 1 else []
            seq += [p[0]] + e[0:3] + [p[1]] + e[3:6]
            if n == 7:
                seq.append("s_waitcnt vmcnt(2)")
            seq += [q[0]] + e[6:9] + [q[1]] + e[9:16]
            if 1 <= n <= 4:
                seq.append(kvload(tl ^ 1, n - 1))
            if n == 5:
                seq += kvnext
            if tl == 1 and n == 6:
                seq.append(f"s_add_u32 s{sC}, s{sC}, 1")
                seq.append(f"s_cmp_lt_u32 s{sC}, 8")
            seq += c
            var = os.environ.get("ATV", "")
            if "nokv" in var:
                seq = [x for x in seq if "buffer_load" not in x and "vmcnt" not in x]
            if "nopv" in var:
                seq = [x for x in seq if x not in p]
            if "noqk" in var:
                seq = [x for x in seq if x not in q]
            if "noexp" in var:
                seq = [x for x in seq if x not in e]
            if "nocvt" in var:
                seq = [x for x in seq if x not in c]
            for x in seq:
                a(x)
    if os.environ.get("ITSTAMP"):
        a("s_memtime s[82:83]")
        a("s_waitcnt lgkmcnt(0)")
        a(f"s_mov_b32 m0, s{sC}")
        a(f"v_writelane_b32 v123, s82, m0")
    a("s_cbranch_scc1 L_kb_at_loop")
    if os.environ.get("ITSTAMP"):
        for k in range(1, 7):
            a(f"v_readlane_b32 s{84+2*k}, v123, {k+1}")
        a("s_branch L_kb_itend")
    for m in pv(7, 1, S[1]):
        a(m)
    a("s_waitcnt vmcnt(0)")
    a.stamp(3)
    a.rstamp(6)
    waitw(a, W_H5, 4, sT)
    a.stamp(4)
    for n in range(8):
        a(f"v_accvgpr_read_b32 v{S[0]+n}, a{16*n+8}")
    s0 = S[0]
    a(f"""
    v_max3_f32 v{s0+8}, v{s0}, v{s0+1}, v{s0+2}
    v_min3_f32 v{s0+9}, v{s0}, v{s0+1}, v{s0+2}
    v_max3_f32 v{s0+8}, v{s0+8}, v{s0+3}, v{s0+4}
    v_min3_f32 v{s0+9}, v{s0+9}, v{s0+3}, v{s0+4}
    v_max3_f32 v{s0+8}, v{s0+8}, v{s0+5}, v{s0+6}
    v_min3_f32 v{s0+9}, v{s0+9}, v{s0+5}, v{s0+6}
    v_max_f32 v{s0+8}, v{s0+8}, v{s0+7}
    v_min_f32 v{s0+9}, v{s0+9}, v{s0+7}
    s_mul_i32 s{sT}, s{sWV}, 6144
    v_add_u32 v118, s{sT}, v{V16}
    v_cmp_lt_f32 vcc, {f2u(2.0**60):#x}, v{s0+8}
    s_mov_b32 s{sT2}, vcc_hi
    v_cmp_gt_f32 vcc, {f2u(2.0**-60):#x}, v{s0+9}
    s_or_b32 s{sT2}, s{sT2}, vcc_hi
    v_add_u32 v119, {2*24576}, v118
    """)
    for n in range(8):
        for q in range(3):
            off = (n >> 1) * 24576 + ((n & 1) * 3 + q) * 1024
            base = 118
            if off >= 2 * 24576:
                off -= 2 * 24576
                base = 119
            a(f"ds_write_b128 v{base}, a[{16*n+4*q}:{16*n+4*q+3}] offset:{off}")
    a(f"""
    s_cmp_lg_u32 s{sT2}, 0
    s_cselect_b32 s{sT2}, 0x10001, 1
    s_cmp_lg_u32 s{sPASS}, 0
    s_cselect_b32 s{sT2}, 1, s{sT2}
    v_mov_b32 v{VT0}, s{sT2}
    s_mul_i32 s{sT}, s{sWV}, 24576
    v_add_u32 v118, s{sT}, v{V16}
    """)
    arrive(a, W_AT, VT0)
    a(f"s_lshl_b32 s65, s{sPASS}, 2\ns_add_u32 s65, s65, 4")
    waitw(a, W_AT, "s65", sT, mask="0xffff")
    a(f"""
    s_lshr_b32 s{sT}, s{sT}, 16
    s_cmp_lg_u32 s{sT}, 0
    s_cselect_b32 s{sT}, 1, 0
    s_cmp_lt_u32 s{sPASS}, s{sT}
    s_cbranch_scc1 L_kb_at_fallback
    """)
    a.stamp(5)
    for src in range(4):
        for t in range(2):
            for q in range(3):
                r = (src * 6 + t * 3 + q) * 4
                r = r if r < 72 else r + 12
                a(f"ds_read_b128 v[{r}:{r+3}], v118 offset:{src*6144 + (t*3+q)*1024}")
    R = lambda src, k: (src * 24 + k) if src < 3 else (84 + k)
    a("s_waitcnt lgkmcnt(12)")
    for k in range(0, 24, 2):
        a(f"v_pk_add_f32 v[{k}:{k+1}], v[{k}:{k+1}], v[{R(1,k)}:{R(1,k)+1}]")
    a("s_waitcnt lgkmcnt(0)")
    for k in range(0, 24, 2):
        a(f"v_pk_add_f32 v[{R(2,k)}:{R(2,k)+1}], v[{R(2,k)}:{R(2,k)+1}], v[{R(3,k)}:{R(3,k)+1}]")
    for k in range(0, 24, 2):
        a(f"v_pk_add_f32 v[{k}:{k+1}], v[{k}:{k+1}], v[{R(2,k)}:{R(2,k)+1}]")
    a("""
    v_mov_b32 v24, v8
    v_mov_b32 v25, v8
    v_mov_b32 v26, v20
    v_mov_b32 v27, v20
    s_nop 0
    v_permlane32_swap_b32 v24, v25
    v_permlane32_swap_b32 v26, v27
    v_rcp_f32 v24, v25
    v_rcp_f32 v26, v27
    """)
    for t in range(2):
        for k in range(0, 12, 2):
            a(f"v_pk_mul_f32 v[{12*t+k}:{12*t+k+1}], v[{12*t+k}:{12*t+k+1}], v[{24+2*t}:{25+2*t}] op_sel_hi:[1,0]")
    for k in range(12):
        a(f"v_cvt_pk_bf16_f32 v{28+k}, v{2*k}, v{2*k+1}")
    for t in range(2):
        for q in range(2):
            a(f"buffer_store_dwordx2 v[{28+6*t+2*q}:{29+6*t+2*q}], v{VO+3*t+q}, {ws}, s64 offen")
    a("s_mov_b32 exec_hi, 0")
    for t in range(2):
        a(f"buffer_store_dwordx2 v[{28+6*t+4}:{29+6*t+4}], v{VO+3*t+2}, {ws}, s64 offen")
    a("L_kb_itend:")
    a.endpgm(1, sWV)

    a("L_kb_at_fallback:")
    a(f"s_mov_b32 s{sKV}, s{sKV0}")
    a(f"s_mov_b32 s{sC}, 0")
    MX = 54
    for n in range(8):
        a(f"v_mov_b32 v{MX+n}, 0xff800000")
    a("L_kb_fb_loop:")
    a(kvload(0, 0))
    a(kvload(0, 1))
    a(f"s_add_u32 s{sKV}, s{sKV}, {KV_REC}")
    a("s_waitcnt vmcnt(0)")
    for n in range(8):
        for m in qk(n, 0, S[0]):
            a(m)
        for k in range(0, 16, 2):
            a(f"v_max3_f32 v{MX+n}, v{MX+n}, v{S[0]+k}, v{S[0]+k+1}")
    a(f"""
    s_add_u32 s{sC}, s{sC}, 1
    s_cmp_lt_u32 s{sC}, 16
    s_cbranch_scc1 L_kb_fb_loop
    s_lshl_b32 s{sT}, s{sWV}, 11
    s_add_u32 s{sT}, s{sT}, {NSC}
    v_lshrrev_b32 v{S[1]}, 2, v{V16}
    v_add_u32 v{S[1]+1}, s{sT}, v{S[1]}
    v_add_u32 v{S[1]}, {NSC}, v{S[1]}
    """)
    for n in range(8):
        a(f"v_mov_b32 v{S[0]+n}, v{MX+n}")
    for n in range(8):
        a(f"v_permlane32_swap_b32 v{S[0]+n}, v{MX+n}")
    for n in range(8):
        a(f"v_max_f32 v{MX+n}, v{MX+n}, v{S[0]+n}")
        a(f"ds_write_b32 v{S[1]+1}, v{MX+n} offset:{256*n}")
    arrive(a, W_AT + 4)
    waitw(a, W_AT + 4, 4, sT)
    for n in range(8):
        for src in range(4):
            a(f"ds_read_b32 v{S[0]+src}, v{S[1]} offset:{2048*src + 256*n}")
        t = S[0]
        a(f"""
        s_waitcnt lgkmcnt(0)
        v_max3_f32 v{t}, v{t}, v{t+1}, v{t+2}
        v_max_f32 v{t}, v{t}, v{t+3}
        v_sub_f32 v{t}, 0, v{t}
        v_and_b32 v{t+1}, 0xffff0000, v{t}
        v_sub_f32 v{t}, v{t}, v{t+1}
        v_and_b32 v{t+2}, 0xffff0000, v{t}
        v_sub_f32 v{t}, v{t}, v{t+2}
        v_lshrrev_b32 v{t+1}, 16, v{t+1}
        s_mov_b32 exec_lo, 0
        v_or_b32 v{6*n+4}, v{t+1}, v{t+2}
        v_lshrrev_b32 v{6*n+5}, 16, v{t}
        s_mov_b32 exec_lo, -1
        """)
    a(f"s_mov_b32 s{sPASS}, 1")
    a("s_branch L_kb_at_start")


def helper(a):
    sHW, sT, sT2, sZo, sWo, sC, sM, sX, sHR, sU = 56, 57, 58, 60, 61, 62, 63, 64, 65, 66
    ws = f"s[{SRD_WS}:{SRD_WS+3}]"
    ZF = 0
    WF = [64, 72]
    VD = [80 + i for i in range(8)]
    WA = [88, 89, 90, 91]
    H16, HH, HL = 92, 93, 94
    Z1 = 96
    BI = 112
    a("L_kb_helper:")
    a(f"""
    s_setprio {os.environ.get("HPRIO0", "3")}
    s_sub_u32 s{sHW}, s{sWV}, 4
    v_lshlrev_b32 v{H16}, 4, v0
    v_lshrrev_b32 v{HH}, 5, v0
    v_and_b32 v{HL}, 31, v0
    v_lshlrev_b32 v1, 3, v0
    s_mul_i32 s{sT}, s{sHW}, {7*16384}
    s_lshl_b32 s{sT2}, s{sI}, 9
    s_add_u32 s{sT}, s{sT}, s{sT2}
    s_add_u32 s{sU}, s{sFB0}, s{sHW}
    s_mul_i32 s{sT2}, s{sI}, 54
    s_add_u32 s{sT2}, s{sT2}, s{sU}
    s_lshl_b32 s{sX}, s{sT2}, 11
    s_add_u32 s{sT2}, s{sX}, {OFF_ZR}
    s_lshl_b32 s{sHR}, s{sHW}, 15
    s_waitcnt lgkmcnt(0)
    """)
    a.srd(SRD_S, WS, 27 * 16384, add=OFF_ST)
    a.srd(SRD_WS, WS, WS_END)
    for k in range(7):
        a(f"buffer_load_dwordx2 v[{32+2*k}:{33+2*k}], v1, s[{SRD_S}:{SRD_S+3}], s{sT} offen")
        if k < 6:
            a(f"s_add_u32 s{sT}, s{sT}, 16384")
    for sb in range(2):
        a(f"buffer_load_dwordx4 v[{16+8*sb}:{19+8*sb}], v{H16}, {ws}, s{sT2} offen")
        a(f"buffer_load_dwordx4 v[{20+8*sb}:{23+8*sb}], v{H16}, {ws}, s{sT2} offen offset:1024")
        if sb == 0:
            a(f"s_add_u32 s{sT2}, s{sT2}, {27*2048}")
    a(f"""
    v_lshrrev_b32 v2, 3, v0
    v_and_b32 v3, 7, v0
    v_lshrrev_b32 v4, 4, v0
    v_xor_b32 v4, v4, v3
    v_lshlrev_b32 v4, 4, v4
    v_lshl_add_u32 v{VD[0]}, v2, 12, v4
    v_xor_b32 v4, 64, v{VD[0]}
    v_add_u32 v{VD[1]}, {32768-1024}, v4
    v_add_u32 v{VD[2]}, {2*(32768-1024)}, v{VD[0]}
    v_add_u32 v{VD[3]}, {3*(32768-1024)}, v4
    v_add_u32 v{VD[4]}, {4*32768}, v{VD[0]}
    v_add_u32 v{VD[5]}, {4*32768}, v{VD[1]}
    v_add_u32 v{VD[6]}, {4*32768}, v{VD[2]}
    v_add_u32 v{VD[7]}, {4*32768}, v{VD[3]}
    v_bfe_u32 v4, v0, 1, 3
    v_xor_b32 v4, v4, v{HH}
    v_lshlrev_b32 v4, 4, v4
    v_lshl_add_u32 v4, v{HL}, 7, v4
    v_add_u32 v{WA[0]}, s{sHR}, v4
    v_xor_b32 v{WA[1]}, 32, v{WA[0]}
    v_xor_b32 v{WA[2]}, 64, v{WA[0]}
    v_xor_b32 v{WA[3]}, 96, v{WA[0]}
    s_lshl_b32 s{sT}, s{sI}, 18
    """)
    a.srd(SRD_W, WSP, 64 * 4096, add=f"s{sT}")
    a.srd(SRD_Z, WS, 128 * 27 * 1024, add=OFF_ZN)
    a(f"""
    s_lshl_b32 s{sWo}, s{sHW}, 10
    s_lshl_b32 s{sT}, s{sHW}, 9
    s_add_u32 s{sT}, s{sT}, {STX}
    v_add_u32 v5, s{sT}, v1
    v_add_u32 v6, {STX}, v1
    """)
    for i in range(128):
        a(f"v_accvgpr_write_b32 a{i}, 0")
    if os.environ.get("NOHELP"):
        a("s_barrier")
        a("s_branch L_kb_h_done")
    a(f"""
    s_barrier
    s_waitcnt vmcnt(4)
    v_pk_add_f32 v[32:33], v[32:33], v[34:35]
    v_pk_add_f32 v[36:37], v[36:37], v[38:39]
    v_pk_add_f32 v[40:41], v[40:41], v[42:43]
    v_pk_add_f32 v[32:33], v[32:33], v[44:45]
    v_pk_add_f32 v[36:37], v[36:37], v[40:41]
    v_pk_add_f32 v[32:33], v[32:33], v[36:37]
    ds_write_b64 v5, v[32:33]
    """)
    arrive(a, W_H1)
    a(f"""
    s_lshl_b32 s{sT}, s{sHW}, 12
    s_add_u32 s{sT}, s{sT}, {NSC}
    v_lshlrev_b32 v7, 6, v{HL}
    v_lshl_add_u32 v7, v{HH}, 3, v7
    v_add_u32 v7, s{sT}, v7
    v_bfe_u32 v8, v0, 2, 2
    v_lshl_add_u32 v8, v{HH}, 3, v8
    v_lshlrev_b32 v8, 6, v8
    v_bfe_u32 v9, v0, 4, 1
    v_lshl_add_u32 v8, v9, 5, v8
    v_and_b32 v9, 3, v0
    v_lshl_add_u32 v8, v9, 3, v8
    v_add_u32 v8, s{sT}, v8
    """)
    waitw(a, W_H1, 4, sT)
    a.stamp(1)
    for k in range(4):
        a(f"ds_read_b64 v[{32+2*k}:{33+2*k}], v6 offset:{512*k}")
    a(f"""
    s_mov_b32 s{sT}, {f2u(1/864):#x}
    s_waitcnt lgkmcnt(0)
    v_pk_add_f32 v[32:33], v[32:33], v[34:35]
    v_pk_add_f32 v[36:37], v[36:37], v[38:39]
    v_pk_add_f32 v[32:33], v[32:33], v[36:37]
    v_mul_f32 v32, s{sT}, v32
    v_mul_f32 v33, s{sT}, v33
    v_fma_f32 v33, -v32, v32, v33
    v_max_f32 v33, 0, v33
    v_add_f32 v33, {f2u(1e-5):#x}, v33
    v_rsq_f32 v34, v33
    s_cmp_ge_u32 s{sHW}, s{sNB}
    v_mul_f32 v35, -v32, v34
    v_mov_b32 v36, v34
    v_mov_b32 v37, v35
    s_cbranch_scc1 L_kb_h_nonorm
    v_permlane32_swap_b32 v34, v36
    v_permlane32_swap_b32 v35, v37
    s_waitcnt vmcnt(0)
    """)
    for sb in range(2):
        for k in range(8):
            a(f"v_lshlrev_b32 v{48+2*k}, 16, v{16+8*sb+k}")
            a(f"v_and_b32 v{49+2*k}, 0xffff0000, v{16+8*sb+k}")
        ab = 34 + 2 * sb
        for k in range(8):
            a(f"v_pk_fma_f32 v[{48+2*k}:{49+2*k}], v[{48+2*k}:{49+2*k}], v[{ab}:{ab+1}], v[{ab}:{ab+1}] op_sel:[0,0,1] op_sel_hi:[1,0,1]")
        for k in range(8):
            a(f"v_cvt_pk_bf16_f32 v{16+8*sb+k}, v{48+2*k}, v{49+2*k}")
        for q in range(4):
            a(f"ds_write_b64 v7, v[{16+8*sb+2*q}:{17+8*sb+2*q}] offset:{2048*sb+16*q}")
    a(f"""
    s_mul_i32 s{sT}, s{sI}, {4*27}
    s_add_u32 s{sT}, s{sT}, s{sU}
    s_lshl_b32 s{sT}, s{sT}, 10
    s_waitcnt lgkmcnt(0)
    """)
    for kl in range(4):
        a(f"ds_read_b64_tr_b16 v[{48+4*kl}:{49+4*kl}], v8 offset:{1024*kl}")
        a(f"ds_read_b64_tr_b16 v[{50+4*kl}:{51+4*kl}], v8 offset:{1024*kl+256}")
    for kl in range(4):
        a(f"s_waitcnt lgkmcnt({6-2*kl})")
        a(f"buffer_store_dwordx4 v[{48+4*kl}:{51+4*kl}], v{H16}, s[{SRD_Z}:{SRD_Z+3}], s{sT} offen sc1")
        if kl < 3:
            a(f"s_add_u32 s{sT}, s{sT}, {27*1024}")
    a("L_kb_h_nonorm:")
    a.stamp(2)

    LA = int(os.environ.get("LA", "2"))
    WSCH = {1: [2, 2, 2, 2], 2: [3, 3, 2, 0], 3: [4, 4, 0, 0]}[LA]
    ZS = " sc1" if not os.environ.get("ZPLAIN") else ""
    sZ0, sZE, sW0, sWE, sMW, sHZ = 68, 69, 70, 71, 72, 73
    FW = [0, 8]
    FZ = [16, 32]
    ZA = 48

    def wdma(i):
        return f"buffer_load_dwordx4 v{VD[i]}, s[{SRD_W}:{SRD_W+3}], s{sWo} offen offset:{1024*(i&3)} lds"

    def wpieces(lo, hi):
        out = []
        for i in range(lo, hi):
            if i == lo or i == 4:
                out.append(f"s_add_u32 m0, s{sMW}, {4096*(i>>2)}")
            out.append(wdma(i))
        if hi == 8:
            out += [f"s_add_u32 s{sWo}, s{sWo}, 128", f"s_cmp_eq_u32 s{sWo}, s{sWE}", f"s_cselect_b32 s{sWo}, s{sW0}, s{sWo}",
                    f"s_xor_b32 s{sMW}, s{sMW}, 8192"]
        return out

    def zdma(slot, nb):
        out = [f"s_add_u32 m0, s{sHZ}, {4096*slot}"]
        out += [f"buffer_load_dwordx4 v{H16}, s[{SRD_Z}:{SRD_Z+3}], s{sZo} offen offset:{1024*b}{ZS} lds" for b in range(nb)]
        out += [f"s_add_u32 s{sZo}, s{sZo}, {27*1024}", f"s_cmp_eq_u32 s{sZo}, s{sZE}", f"s_cselect_b32 s{sZo}, s{sZ0}, s{sZo}"]
        return out

    a("s_waitcnt vmcnt(0)")
    a.stamp(3)
    arrive(a, W_H2, rtn=10)
    rot = 0 if os.environ.get("HNOROT") else 1
    a(f"""
    s_lshl_b32 s{sT2}, s{sJ}, 8
    s_add_u32 s{sT2}, s{sT2}, {OFF_CNT}
    v_mov_b32 v11, 0
    v_mov_b32 v12, 1
    s_mov_b32 s{sC}, 0
    s_mov_b32 s{SPIN}, 0x40000
    s_and_b32 s74, s{sI}, 3
    s_lshl_b32 s74, s74, 1
    s_add_u32 s74, s74, s{sJ}
    s_and_b32 s74, s74, {7 * rot}
    s_mov_b32 s{sW0}, s{sWo}
    s_add_u32 s{sWE}, s{sWo}, 1024
    s_lshl_b32 s75, s74, 7
    s_add_u32 s{sWo}, s{sWo}, s75
    s_mov_b32 s{sMW}, s{sHR}
    s_add_u32 s{sHZ}, s{sHR}, 16384
    s_waitcnt lgkmcnt(0)
    v_readfirstlane_b32 s{sT}, v10
    s_cmp_eq_u32 s{sT}, 3
    s_cbranch_scc0 L_kb_h_nosig
    s_mov_b64 exec, 1
    buffer_atomic_add v12, v11, {ws}, s{sT2} offen sc0 sc1
    s_mov_b64 exec, -1
    s_lshl_b32 s75, s{sJ}, 12
    s_add_u32 s75, s75, {OFF_FLG}
    v_lshlrev_b32 v13, 7, v{HL}
    v_mov_b32 v14, 1
    s_waitcnt vmcnt(0)
    v_readfirstlane_b32 s{sT}, v12
    s_cmp_eq_u32 s{sT}, 31
    s_cbranch_scc0 L_kb_h_nosig
    buffer_store_dword v14, v13, {ws}, s75 offen sc1
    L_kb_h_nosig:
    """)
    for x in wpieces(0, 8):
        a(x)
    a(f"""
    s_mul_i32 s{sZ0}, s{sHW}, {32*27}
    s_add_u32 s{sZ0}, s{sZ0}, s{sFB0}
    s_lshl_b32 s{sZ0}, s{sZ0}, 10
    s_add_u32 s{sZE}, s{sZ0}, {32*27*1024}
    s_mul_i32 s75, s74, {4*27*1024}
    s_add_u32 s{sZo}, s{sZ0}, s75
    v_add_u32 v{ZA}, s{sHZ}, v{H16}
    s_cmp_lg_u32 s{sHW}, 0
    s_cbranch_scc1 L_kb_h_follow
    s_lshl_b32 s{sT2}, s{sJ}, 5
    s_add_u32 s{sT2}, s{sT2}, s{sI}
    s_lshl_b32 s{sT2}, s{sT2}, 7
    s_add_u32 s{sT2}, s{sT2}, {OFF_FLG}
    s_mov_b64 exec, 1
    L_kb_h_poll:
    buffer_load_dword v10, v11, {ws}, s{sT2} offen sc1
    s_waitcnt vmcnt(0)
    v_readfirstlane_b32 s{sT}, v10
    s_cmp_lg_u32 s{sT}, 0
    s_cbranch_scc1 L_kb_h_go
    s_sleep {os.environ.get("PSLEEP", "4")}
    s_sub_u32 s{SPIN}, s{SPIN}, 1
    s_cbranch_scc0 L_kb_h_poll
    L_kb_h_go:
    """)
    arrive(a, W_H3)
    a("L_kb_h_follow:")
    waitw(a, W_H3, 1, sT)
    if os.environ.get("FSAFE"):
        a("s_waitcnt vmcnt(0)")
    a(f"""
    s_setprio {os.environ.get("HPRIO", "0")}
    """)
    a.stamp(4)
    a(f"""
    s_cmp_eq_u32 s{sNB}, 3
    s_cbranch_scc1 L_kb_h_main3
    """)

    def freads(buf, kp, nb):
        r = [f"ds_read_b128 v[{FW[buf]}:{FW[buf]+3}], v{WA[kp]}",
             f"ds_read_b128 v[{FZ[buf]}:{FZ[buf]+3}], v{ZA} offset:{4096*kp}",
             f"ds_read_b128 v[{FW[buf]+4}:{FW[buf]+7}], v{WA[kp]} offset:4096"]
        r += [f"ds_read_b128 v[{FZ[buf]+4*b}:{FZ[buf]+4*b+3}], v{ZA} offset:{4096*kp+1024*b}" for b in range(1, nb)]
        return r

    def main(nb):
        a(f"L_kb_h_main{nb}:")
        for k in range(LA + 1):
            for x in zdma(k, nb):
                a(x)
        for x in wpieces(0, WSCH[0]):
            a(x)
        a(f"s_waitcnt vmcnt({LA*nb + WSCH[0]})")
        for r in freads(0, 0, nb):
            a(r)
        if not os.environ.get("XSAFE"):
            a(f"v_xor_b32 v{WA[0]}, 8192, v{WA[0]}")
        wn = lambda kp: WSCH[(kp + 1) & 3]
        a(f"L_kb_h_loop{nb}:")
        for kp in range(4):
            buf = kp & 1
            allowed = sum(nb + wn((kp - d) & 3) for d in range(1, LA))
            pre = []
            if kp == 3:
                pre += [f"s_add_u32 s{sC}, s{sC}, 1", f"s_cmp_ge_u32 s{sC}, 7", f"s_cselect_b32 s{SRD_W+2}, 0, s{SRD_W+2}"]
            if kp == (31 - LA) & 3:
                pre += [f"s_cmp_ge_u32 s{sC}, {((31 - LA) >> 2) + (1 if kp == 3 else 0)}", f"s_cselect_b32 s{SRD_Z+2}, 0, s{SRD_Z+2}"]
            for x in pre:
                a(x)
            a(f"s_waitcnt vmcnt({allowed}) lgkmcnt(0)")
            lo = sum(WSCH[:(kp + 1) & 3])
            rd = freads(buf ^ 1, (kp + 1) & 3, nb)
            fill = rd + zdma((kp + LA + 1) & 3, nb) + (wpieces(lo, lo + wn(kp)) if wn(kp) else [])
            if os.environ.get("XSAFE"):
                fill.insert(len(rd), f"v_xor_b32 v{WA[kp]}, 8192, v{WA[kp]}")
            else:
                fill.insert(len(rd), f"v_xor_b32 v{WA[(kp + 1) & 3]}, 8192, v{WA[(kp + 1) & 3]}")
            nm = 2 * nb
            k = 0
            for m in range(nm):
                b, tb = m >> 1, m & 1
                ac = m * 16
                a(f"v_mfma_f32_32x32x16_bf16 a[{ac}:{ac+15}], v[{FZ[buf]+4*b}:{FZ[buf]+4*b+3}], v[{FW[buf]+4*tb}:{FW[buf]+4*tb+3}], a[{ac}:{ac+15}]")
                e = (len(fill) * (m + 1) + nm - 1) // nm
                for x in fill[k:e]:
                    a(x)
                k = e
        a(f"""
        s_cmp_lt_u32 s{sC}, 8
        s_cbranch_scc1 L_kb_h_loop{nb}
        """)

    main(4)
    a("s_branch L_kb_h_epi")
    main(3)
    a("L_kb_h_epi:")
    a.stamp(5)
    a.srd(SRD_S, BSP, 4096)
    a(f"""
    s_add_u32 s{sT2}, s{sX}, {OFF_Z1}
    s_lshl_b32 s{sT}, s{sI}, 7
    s_waitcnt vmcnt(0) lgkmcnt(0)
    v_lshlrev_b32 v1, 1, v{HL}
    v_add_u32 v2, s{sHR}, v{H16}
    buffer_load_ushort v{BI}, v1, s[{SRD_S}:{SRD_S+3}], s{sT} offen
    buffer_load_ushort v{BI+1}, v1, s[{SRD_S}:{SRD_S+3}], s{sT} offen offset:64
    """)
    for tb in range(2):
        a(f"buffer_load_dwordx4 v[{Z1+8*tb}:{Z1+8*tb+3}], v{H16}, {ws}, s{sT2} offen")
        a(f"buffer_load_dwordx4 v[{Z1+8*tb+4}:{Z1+8*tb+7}], v{H16}, {ws}, s{sT2} offen offset:1024")
        if tb == 0:
            a(f"s_add_u32 s{sT2}, s{sT2}, {27*2048}")
    for k in range(32):
        a(f"ds_write_b128 v2, a[{4*k}:{4*k+3}] offset:{1024*k}")
    arrive(a, W_H4)
    a(f"""
    s_lshl_b32 s{sT}, s{sHW}, 13
    v_add_u32 v2, s{sT}, v{H16}
    v_add_u32 v3, 65536, v2
    s_mul_i32 s{sT2}, s{sI}, {2*54}
    s_lshl_b32 s{sU}, s{sU}, 1
    s_add_u32 s{sU}, s{sU}, s{sT2}
    s_lshl_b32 s{sU}, s{sU}, 10
    s_add_u32 s{sU}, s{sU}, {OFF_U}
    """)
    waitw(a, W_H4, 4, sT)
    a.stamp(6)
    a(f"""
    s_cmp_ge_u32 s{sHW}, s{sNB}
    s_cbranch_scc1 L_kb_h_done
    """)
    for tb in range(2):
        for src in range(4):
            for q in range(4):
                r = 16 + src * 16 + 4 * q
                a(f"ds_read_b128 v[{r}:{r+3}], v{2 + (src >> 1)} offset:{(src & 1)*32768 + tb*4096 + q*1024}")
        a("s_waitcnt lgkmcnt(8)")
        for k in range(0, 16, 2):
            a(f"v_pk_add_f32 v[{16+k}:{17+k}], v[{16+k}:{17+k}], v[{32+k}:{33+k}]")
        a("s_waitcnt lgkmcnt(0)")
        if tb == 1:
            arrive(a, W_H5)
        for k in range(0, 16, 2):
            a(f"v_pk_add_f32 v[{48+k}:{49+k}], v[{48+k}:{49+k}], v[{64+k}:{65+k}]")
        if tb == 0:
            a("s_waitcnt vmcnt(0)")
            a(f"v_lshlrev_b32 v{BI}, 16, v{BI}")
            a(f"v_lshlrev_b32 v{BI+1}, 16, v{BI+1}")
        for k in range(0, 16, 2):
            a(f"v_pk_add_f32 v[{16+k}:{17+k}], v[{16+k}:{17+k}], v[{48+k}:{49+k}]")
        if os.environ.get("UPART"):
            sp = int(os.environ["UPART"])
            for q in range(4):
                a(f"ds_read_b128 v[{16+4*q}:{19+4*q}], v{2 + (sp >> 1)} offset:{(sp & 1)*32768 + tb*4096 + q*1024}")
            a("s_waitcnt lgkmcnt(0)")
        for k in range(8):
            a(f"v_lshlrev_b32 v{32+2*k}, 16, v{Z1+8*tb+k}")
            a(f"v_and_b32 v{33+2*k}, 0xffff0000, v{Z1+8*tb+k}")
        for k in range(0, 16, 2):
            a(f"v_pk_add_f32 v[{16+k}:{17+k}], v[{16+k}:{17+k}], v[{BI}:{BI+1}] op_sel:[0,{tb}] op_sel_hi:[1,{tb}]")
        for k in range(0, 16, 2):
            a(f"v_pk_mul_f32 v[{16+k}:{17+k}], v[{16+k}:{17+k}], v[{32+k}:{33+k}]")
        for k in range(8):
            a(f"v_cvt_pk_bf16_f32 v{4+k}, v{16+2*k}, v{17+2*k}")
        a(f"buffer_store_dwordx4 v[4:7], v{H16}, {ws}, s{sU} offen")
        a(f"buffer_store_dwordx4 v[8:11], v{H16}, {ws}, s{sU} offen offset:1024")
        if tb == 0:
            a(f"s_add_u32 s{sU}, s{sU}, {54*1024}")
    a("s_branch L_kb_h_fin")
    a("L_kb_h_done:")
    arrive(a, W_H5)
    a("L_kb_h_fin:")
    a.endpgm(1, sWV)


if __name__ == "__main__":
    l = gen()
    print(len(l), "lines")
```

```python
from asmlib import Asm
from layout import *
from ka import load_args, X, OUT, WS
import math

RS = 400
PART = 64 * RS
LDS_C = 4 * PART
sI, sJ, sWV, sOB0, sNBO = 34, 35, 36, 37, 38
SRD_A0, SRD_A1, SRD_W, SRD_X, SRD_O = 40, 44, 48, 52, 56
R = 4


def gen():
    a = Asm("kc")
    a.stamp(0)
    load_args(a)
    sT, sT2, sAo, sC, sN = 60, 61, 62, 63, 64
    sW = [65, 66, 67]
    V16 = 100
    a(f"""
    s_cmp_ge_u32 s2, 256
    s_cbranch_scc1 L_kc_end
    v_lshrrev_b32 v1, 6, v0
    s_and_b32 s{sI}, s2, 7
    s_lshl_b32 s{sI}, s{sI}, 2
    s_bfe_u32 s39, s2, 0x20003
    s_add_u32 s{sI}, s{sI}, s39
    v_readfirstlane_b32 s{sWV}, v1
    s_lshr_b32 s{sJ}, s2, 5
    s_min_u32 s39, s{sJ}, 3
    s_mul_i32 s{sOB0}, s{sJ}, 3
    s_sub_u32 s{sOB0}, s{sOB0}, s39
    s_sub_u32 s39, s{sJ}, 3
    s_cmp_lt_u32 s39, 4
    s_cselect_b32 s{sNBO}, 3, 2
    v_and_b32 v2, 63, v0
    v_lshlrev_b32 v{V16}, 4, v2
    s_movk_i32 s{sT}, 54
    s_mov_b32 s{sT2}, {OFF_U}
    s_movk_i32 s{sN}, 28
    s_cmp_lt_u32 s{sWV}, 2
    s_cselect_b32 s{sT}, 40, s{sT}
    s_cselect_b32 s{sT2}, {OFF_OF}, s{sT2}
    s_cselect_b32 s{sN}, 20, s{sN}
    s_cselect_b32 s68, 0, 40
    s_lshl_b32 s{sT}, s{sT}, 10
    s_mul_i32 s69, s{sT}, s{sI}
    s_lshl_b32 s69, s69, 1
    s_add_u32 s{sT2}, s{sT2}, s69
    s_add_u32 s69, s{sT2}, s{sT}
    s_and_b32 s70, s{sWV}, 1
    s_mul_i32 s70, s70, s{sN}
    s_lshl_b32 s{sAo}, s70, 10
    s_add_u32 s68, s68, s70
    s_mul_i32 s70, s{sOB0}, 94
    s_add_u32 s68, s68, s70
    s_lshl_b32 s{sW[0]}, s68, 10
    s_add_u32 s{sW[1]}, s{sW[0]}, {94*1024}
    s_add_u32 s{sW[2]}, s{sW[0]}, {2*94*1024}
    s_lshr_b32 s{sC}, s{sN}, 2
    s_waitcnt lgkmcnt(0)
    """)
    a.srd(SRD_A0, WS, f"s{sT}", add=f"s{sT2}")
    a.srd(SRD_A1, WS, f"s{sT}", add="s69")
    a.srd(SRD_W, WS, 20 * 94 * 1024, add=OFF_WT)
    a(f"""
    s_cmp_eq_u32 s{sNBO}, 2
    s_cbranch_scc1 L_kc_main2
    """)

    def loads(slot, nb, imm):
        r = 20 * slot
        l = [f"buffer_load_dwordx4 v[{r+4*tb}:{r+4*tb+3}], v{V16}, s[{SRD_A0+4*tb}:{SRD_A0+4*tb+3}], s{sAo} offen offset:{imm}" for tb in range(2)]
        l += [f"buffer_load_dwordx4 v[{r+8+4*b}:{r+11+4*b}], v{V16}, s[{SRD_W}:{SRD_W+3}], s{sW[b]} offen offset:{imm}" for b in range(nb)]
        return l

    def adv(nb):
        for s in [sAo] + sW[:nb]:
            a(f"s_add_u32 s{s}, s{s}, 4096")

    def main(nb):
        a(f"L_kc_main{nb}:")
        for k in range(3):
            for x in loads(k + 1, nb, 1024 * k):
                a(x)
        for i in range(32 * nb):
            a(f"v_accvgpr_write_b32 a{i}, 0")
        a.stamp(1)
        a(f"L_kc_loop{nb}:")
        for k in range(4):
            if k == 1:
                a(f"s_sub_u32 s{sC}, s{sC}, 1")
                a(f"s_cmp_eq_u32 s{sC}, 0")
                a(f"s_cselect_b32 s{SRD_A0+2}, 0, s{SRD_A0+2}")
                a(f"s_cselect_b32 s{SRD_A1+2}, 0, s{SRD_A1+2}")
                a(f"s_cselect_b32 s{SRD_W+2}, 0, s{SRD_W+2}")
                adv(nb)
            for x in loads(((k + 3) & 3) + 1, nb, 1024 * ((k + 3) & 3)):
                a(x)
            a(f"s_waitcnt vmcnt({3*(nb+2)})")
            r = 20 * (k + 1)
            for b in range(nb):
                for tb in range(2):
                    ac = (2 * b + tb) * 16
                    a(f"v_mfma_f32_32x32x16_bf16 a[{ac}:{ac+15}], v[{r+8+4*b}:{r+11+4*b}], v[{r+4*tb}:{r+4*tb+3}], a[{ac}:{ac+15}]")
        a(f"""
        s_cmp_lg_u32 s{sC}, 0
        s_cbranch_scc1 L_kc_loop{nb}
        """)
        a.stamp(2)
        npc = 4 * nb
        a(f"""
        s_mul_i32 s{sT}, s{sI}, {64*1280}
        s_lshl_b32 s{sT2}, s{sOB0}, 6
        s_add_u32 s{sT}, s{sT}, s{sT2}
        """)
        a.srd(SRD_X, X, 2048 * 1280)
        a.srd(SRD_O, OUT, 2048 * 1280)
        for k in range(nb):
            a(f"v_add_u32 v3, {256*k}, v0")
            if nb == 2:
                a("v_lshrrev_b32 v4, 3, v3")
                a("v_and_b32 v3, 7, v3")
            else:
                a("v_mul_u32_u24 v4, 43691, v3")
                a("v_lshrrev_b32 v4, 19, v4")
                a("v_mul_u32_u24 v5, 12, v4")
                a("v_sub_u32 v3, v3, v5")
            a(f"v_mul_u32_u24 v5, 1280, v4")
            a(f"v_lshl_add_u32 v{104+k}, v3, 4, v5")
            a(f"v_mul_u32_u24 v5, {RS}, v4")
            a(f"v_lshl_add_u32 v{108+k}, v3, 5, v5")
            a(f"buffer_load_dwordx4 v[{112+4*k}:{115+4*k}], v{104+k}, s[{SRD_X}:{SRD_X+3}], s{sT} offen")
        a(f"""
        v_and_b32 v3, 31, v2
        v_lshrrev_b32 v4, 5, v2
        v_mul_u32_u24 v3, {RS}, v3
        v_lshl_add_u32 v3, v4, 4, v3
        s_mul_i32 s{sT2}, s{sWV}, {PART}
        v_add_u32 v3, s{sT2}, v3
        """)
        for b in range(nb):
            for tb in range(2):
                for q in range(4):
                    ac = (2 * b + tb) * 16 + 4 * q
                    a(f"ds_write_b128 v3, a[{ac}:{ac+3}] offset:{tb*32*RS + b*128 + q*32}")
        a(f"s_waitcnt vmcnt({nb}) lgkmcnt(0)\ns_barrier")
        a.stamp(3)
        for k in range(nb):
            a(f"v_add_u32 v4, {2*PART}, v{108+k}")
            for w in range(4):
                base = 108 + k if w < 2 else 4
                a(f"ds_read_b128 v[{8+8*w}:{11+8*w}], v{base} offset:{(w&1)*PART}")
                a(f"ds_read_b128 v[{12+8*w}:{15+8*w}], v{base} offset:{(w&1)*PART+16}")
            a("s_waitcnt lgkmcnt(0)")
            for p in range(0, 8, 2):
                a(f"v_pk_add_f32 v[{24+p}:{25+p}], v[{24+p}:{25+p}], v[{32+p}:{33+p}]")
            for p in range(0, 8, 2):
                a(f"v_pk_add_f32 v[{8+p}:{9+p}], v[{8+p}:{9+p}], v[{16+p}:{17+p}]")
            for p in range(8):
                a(f"v_mul_f32 v{16+p}, {f2u(-math.log2(math.e)):#x}, v{24+p}")
            for p in range(8):
                a(f"v_exp_f32 v{16+p}, v{16+p}")
            for p in range(0, 8, 2):
                a(f"v_pk_mul_f32 v[{8+p}:{9+p}], v[{8+p}:{9+p}], v[{24+p}:{25+p}]")
            for p in range(8):
                a(f"v_add_f32 v{16+p}, 1.0, v{16+p}")
            for p in range(8):
                a(f"v_rcp_f32 v{16+p}, v{16+p}")
            if k == 0:
                a("s_waitcnt vmcnt(0)")
            for p in range(4):
                a(f"v_lshlrev_b32 v{24+2*p}, 16, v{112+4*k+p}")
                a(f"v_and_b32 v{25+2*p}, 0xffff0000, v{112+4*k+p}")
            for p in range(0, 8, 2):
                a(f"v_pk_fma_f32 v[{8+p}:{9+p}], v[{8+p}:{9+p}], v[{16+p}:{17+p}], v[{24+p}:{25+p}]")
            for p in range(4):
                a(f"v_cvt_pk_bf16_f32 v{40+4*k+p}, v{8+2*p}, v{9+2*p}")
            a(f"buffer_store_dwordx4 v[{40+4*k}:{43+4*k}], v{104+k}, s[{SRD_O}:{SRD_O+3}], s{sT} offen")
        a.endpgm(2, sWV)

    main(3)
    main(2)
    a.label("L_kc_end")
    a("s_endpgm")
    return a.finish()


if __name__ == "__main__":
    for e in range(768):
        assert (e * 43691) >> 19 == e // 12
    l = gen()
    print(len(l), "lines")
```

```python
OFF_QG = 0
OFF_KV = 0x280000
KV_REC = 3584
OFF_ST = 0x2B8000
OFF_CNT = 0x324000
OFF_FLG = 0x325000
OFF_Z1 = 0x330000
OFF_ZR = OFF_Z1 + 0x360000
OFF_ZN = OFF_ZR + 0x360000
OFF_U = OFF_ZN + 0x360000
OFF_OF = OFF_U + 0x360000
OFF_WT = OFF_OF + 0x280000
WS_END = OFF_WT + 20 * 94 * 1024
import struct
def f2u(x):
    return struct.unpack("<I", struct.pack("<f", x))[0]
```

```python
import sys, os
sys.path.insert(0, os.path.dirname(__file__))
import ka, kb, kc
from asmlib import kernel_text, kd_text
NAME = "recurrent_scan__grouped_kv_mqa__mixer_gmlp__prompt"
ref = open(f"cdna_kernels/{NAME}.s.ref").read().split("\n")
head = [l for l in ref if l.startswith(";") and "@launch" not in l and "Override launch" not in l and "grid=ceil" not in l]
def build(extra_pre=0, extra_post=0):
    ks = [("ka_kernel", ka.gen(), 208, 208, (ka.NWG_A, 512, ka.LDS_A)),
          ("kb_kernel", kb.gen(), 256, 128, (256, 512, kb.LDS_B)),
          ("kc_kernel", kc.gen(), 224, 128, (256, 256, kc.LDS_C))]
    out = list(head)
    L = [f"; @launch kernel={n} grid=({g},1,1) block=({b},1,1) lds={lds}" for n, _, _, _, (g, b, lds) in ks]
    E = "; @launch kernel=nop_kernel grid=(256,1,1) block=(256,1,1) lds=0"
    out += [E] * extra_pre + L + [E] * extra_post
    out.append('.amdgcn_target "amdgcn-amd-amdhsa--gfx950"')
    out.append(".text")
    txt = "\n".join(out) + "\n"
    for n, l, *_ in ks:
        txt += kernel_text(n, l)
    if extra_pre or extra_post:
        txt += kernel_text("nop_kernel", ["  s_endpgm"])
    txt += '.section .rodata,"a"\n'
    for n, l, nv, acc, _ in ks:
        txt += kd_text(n, nv, acc)
    if extra_pre or extra_post:
        txt += kd_text("nop_kernel", 8, 8)
    return txt
if __name__ == "__main__":
    dst = sys.argv[1] if len(sys.argv) > 1 else f"cdna_kernels/{NAME}.s"
    pre = int(sys.argv[2]) if len(sys.argv) > 2 else 0
    post = int(sys.argv[3]) if len(sys.argv) > 3 else 0
    open(dst, "w").write(build(pre, post))
    print("wrote", dst)
```

```python
import re, os
DEBUG = bool(os.environ.get("KDEBUG"))
OFF_DBG = 0x2000000

TRANS = ("v_exp_f32", "v_log_f32", "v_rcp_f32", "v_rsq_f32", "v_sqrt_f32", "v_sin_f32", "v_cos_f32",
         "v_rcp_iflag_f32", "v_exp_f16")


def regs_of(tok):
    tok = tok.strip()
    neg = tok.lstrip("-")
    if neg.startswith("abs(") or neg.startswith("|"):
        neg = neg.replace("abs(", "").replace(")", "").replace("|", "")
    m = re.fullmatch(r"([vas])(\d+)", neg)
    if m:
        return [(m.group(1), int(m.group(2)))]
    m = re.fullmatch(r"([vas])\[(\d+):(\d+)\]", neg)
    if m:
        return [(m.group(1), i) for i in range(int(m.group(2)), int(m.group(3)) + 1)]
    if neg == "vcc":
        return [("s", "vcc")]
    if neg in ("vcc_lo", "vcc_hi"):
        return [("s", "vcc")]
    if neg == "exec":
        return [("s", "exec")]
    if neg == "m0":
        return [("s", "m0")]
    return []


class Ins:
    def __init__(self, text):
        self.text = text
        t = text.split(";")[0].strip()
        self.label = None
        self.op = None
        self.dst = []
        self.src = []
        self.srcC = []
        self.srcAB = []
        self.states = 1
        self.target = None
        if not t or t.startswith("."):
            self.kind = "dir"
            self.states = 0
            return
        if t.endswith(":"):
            self.kind = "label"
            self.label = t[:-1]
            self.states = 0
            return
        parts = t.split(None, 1)
        op = parts[0]
        self.op = op
        rest = parts[1] if len(parts) > 1 else ""
        ops = []
        depth = 0
        cur = ""
        for ch in rest:
            if ch in "[(":
                depth += 1
            if ch in "])":
                depth -= 1
            if ch == "," and depth == 0:
                ops.append(cur.strip())
                cur = ""
            else:
                cur += ch
        if cur.strip():
            ops.append(cur.strip())
        mods = ""
        if ops:
            last = ops[-1].split(None, 1)
            ops[-1] = last[0]
            mods = last[1] if len(last) > 1 else ""
        self.mods = mods
        self.ops = ops
        R = [regs_of(o) for o in ops]
        base = re.sub(r"_(e32|e64|dpp|sdwa)$", "", op)
        self.base = base
        self.dpp = op.endswith("_dpp") or "quad_perm" in mods or "row_" in mods
        if op.startswith("v_mfma") or op.startswith("v_smfmac"):
            self.kind = "mfma"
            self.dst = R[0]
            self.srcAB = R[1] + R[2]
            self.srcC = R[3]
            self.src = self.srcAB + self.srcC
            if "32x32x4_2b" in op or "32x32x4bf16" in op:
                self.passes = 16
            elif "32x32" in op:
                self.passes = 8
            elif "16x16" in op:
                self.passes = 4
            else:
                raise ValueError(op)
        elif op.startswith("v_"):
            self.kind = "valu"
            if base.startswith("v_cmp"):
                self.dst = R[0]
                self.src = sum(R[1:], [])
                if base.startswith("v_cmpx"):
                    self.dst = self.dst + [("s", "exec")]
            elif base in ("v_permlane32_swap_b32", "v_permlane16_swap_b32", "v_swap_b32"):
                self.dst = R[0] + R[1]
                self.src = R[0] + R[1]
            elif base in ("v_add_co_u32", "v_sub_co_u32", "v_addc_co_u32", "v_subb_co_u32", "v_subrev_co_u32"):
                self.dst = R[0] + R[1]
                self.src = sum(R[2:], [])
            elif base in ("v_fmac_f32", "v_dot2c_f32_bf16", "v_pk_fmac_f16"):
                self.dst = R[0]
                self.src = sum(R, [])
            elif base == "v_nop":
                pass
            else:
                self.dst = R[0]
                self.src = sum(R[1:], [])
                if base == "v_cndmask_b32" and len(ops) == 3:
                    self.src = self.src + [("s", "vcc")]
                if self.dpp:
                    self.src = self.src + R[0]
            self.trans = base in TRANS
            self.dot = base.startswith("v_dot")
        elif op.startswith("buffer_") or op.startswith("global_"):
            self.kind = "vmem"
            self.lds = " lds" in (" " + mods) or "_lds_" in op
            if op.startswith("buffer_load"):
                if self.lds:
                    self.src = sum(R, []) + [("s", "m0")]
                else:
                    self.dst = R[0]
                    self.src = sum(R[1:], [])
            elif op.startswith("buffer_store"):
                self.src = sum(R, [])
                self.data = R[0]
            elif op.startswith("buffer_atomic"):
                self.src = sum(R, [])
                if "sc0" in mods:
                    self.dst = R[0]
            elif op.startswith("global_load"):
                if self.lds:
                    self.src = sum(R, []) + [("s", "m0")]
                else:
                    self.dst = R[0]
                    self.src = sum(R[1:], [])
            elif op.startswith("global_store"):
                self.src = sum(R, [])
                self.data = R[1]
            elif op.startswith("global_atomic"):
                if "sc0" in mods:
                    self.dst = R[0]
                    self.src = sum(R[1:], [])
                else:
                    self.src = sum(R, [])
            elif op in ("buffer_inv", "buffer_wbl2"):
                pass
            else:
                raise ValueError(op)
        elif op.startswith("ds_"):
            self.kind = "ds"
            if op.startswith("ds_read") or "_rtn_" in op or op.startswith("ds_bpermute") or op.startswith("ds_swizzle") or op.startswith("ds_permute"):
                self.dst = R[0]
                self.src = sum(R[1:], [])
            else:
                self.src = sum(R, [])
        elif op.startswith("s_"):
            self.kind = "salu"
            if op == "s_nop":
                self.states = int(ops[0], 0) + 1
            elif op.startswith("s_cbranch") or op == "s_branch":
                self.target = ops[0]
                self.kind = "branch"
            elif op == "s_call_b64":
                self.target = ops[1]
                self.kind = "call"
                self.dst = R[0]
            elif op == "s_setpc_b64":
                self.kind = "ret"
                self.src = R[0]
            elif op == "s_endpgm":
                self.kind = "end"
            elif op.startswith("s_cmp") or op in ("s_waitcnt", "s_barrier", "s_sleep", "s_setprio"):
                self.src = sum(R, [])
            elif op.startswith("s_load") or op.startswith("s_memtime") or op.startswith("s_memrealtime"):
                self.dst = R[0]
                self.src = sum(R[1:], [])
            else:
                self.dst = R[0] if R else []
                self.src = sum(R[1:], [])
                if "saveexec" in op:
                    self.dst = self.dst + [("s", "exec")]
        else:
            raise ValueError("unknown op " + text)


def isv(r):
    return r[0] in ("v", "a")


def required(p, c):
    need = 0
    pd = set(p.dst)
    cs = set(c.src)
    cd = set(c.dst)
    if p.kind == "valu":
        vd = {r for r in pd if isv(r)}
        sd = {r for r in pd if r[0] == "s"}
        if c.kind == "mfma" and vd & cs:
            need = max(need, 2)
        if c.kind == "valu":
            if p.trans and not c.trans and vd & cs:
                need = max(need, 1)
            if c.base.startswith("v_permlane") and vd & cs:
                need = max(need, 2)
            if c.dpp and vd & cs:
                need = max(need, 2)
            if c.base in ("v_readlane_b32", "v_readfirstlane_b32") and vd & cs:
                need = max(need, 1)
            if sd & cs:
                need = max(need, 4 if c.base in ("v_readlane_b32", "v_writelane_b32") else 2)
            if ("s", "exec") in sd:
                if c.dpp:
                    need = max(need, 5)
                if c.base.startswith("v_permlane") or c.base in ("v_readlane_b32", "v_readfirstlane_b32", "v_writelane_b32"):
                    need = max(need, 4)
            if p.dot:
                if c.base == p.base:
                    ab = set(sum([regs_of(o) for o in c.ops[1:3]], []))
                    if vd & ab:
                        need = max(need, 3)
                elif vd & (cs | cd):
                    need = max(need, 3)
            if ("sdwa" in p.op or ("op_sel" in p.mods and not p.base.startswith("v_pk"))) and vd & (cs | cd):
                need = max(need, 1)
        if p.dot and c.kind in ("mfma", "vmem", "ds") and vd & (cs | cd):
            need = max(need, 3)
        if c.kind == "vmem" and sd & cs:
            need = max(need, 5)
        if c.kind == "mfma" and ("s", "exec") in sd:
            need = max(need, 4)
        if c.kind in ("salu", "branch") and sd & cs:
            need = max(need, 1)
    if p.kind == "mfma":
        tab = {4: (6, 8, 3), 8: (10, 12, 7), 16: (18, 20, 15)}[p.passes]
        if c.kind == "mfma":
            cc = set(c.srcC)
            if pd & cc:
                if not (list(p.dst) == list(c.srcC) and p.passes == c.passes):
                    need = max(need, tab[0])
            if pd & set(c.srcAB):
                need = max(need, tab[1])
            if pd & cd and not (pd & cc):
                if p.passes != c.passes:
                    need = max(need, tab[0])
        elif c.kind in ("valu", "vmem", "ds"):
            if pd & (cs | cd):
                need = max(need, tab[1])
            if c.kind == "valu" and set(p.srcC) & cd:
                need = max(need, tab[2])
    if p.kind == "salu" and ("s", "m0") in pd:
        if c.kind == "vmem" and getattr(c, "lds", False):
            need = max(need, 1)
    if p.kind == "vmem" and hasattr(p, "data") and ("x3" in p.op or "x4" in p.op):
        if set(p.data) & cd:
            need = max(need, 2 if c.kind in ("valu", "mfma") else 1)
    return need


MAXD = 20


def fix_hazards(lines, verbose=True, name=""):
    total = 0
    for _ in range(10000):
        ins = [Ins(l) for l in lines]
        labels = {x.label: i for i, x in enumerate(ins) if x.label}
        preds = [[] for _ in ins]
        for i, x in enumerate(ins):
            if x.kind == "end":
                continue
            if x.kind == "call":
                preds[labels[x.target]].append(i)
                for k, y in enumerate(ins):
                    if y.kind == "ret" and y.src == x.dst and i + 1 < len(ins):
                        preds[i + 1].append(k)
                continue
            if x.kind == "ret":
                continue
            if x.kind == "branch":
                if x.target in labels:
                    preds[labels[x.target]].append(i)
                if x.op != "s_branch" and i + 1 < len(ins):
                    preds[i + 1].append(i)
            elif i + 1 < len(ins):
                preds[i + 1].append(i)
        found = None
        for i, c in enumerate(ins):
            if c.kind in ("dir", "label", "end"):
                continue
            stack = [(j, 0) for j in preds[i]]
            seen = {}
            worst = 0
            who = None
            while stack:
                j, d = stack.pop()
                if j in seen and seen[j] <= d:
                    continue
                seen[j] = d
                p = ins[j]
                if p.kind not in ("dir", "label"):
                    need = required(p, c) - d
                    if need > worst:
                        worst = need
                        who = p
                nd = d + p.states
                if nd < MAXD:
                    for k in preds[j]:
                        stack.append((k, nd))
            if worst > 0:
                found = (i, worst, who)
                break
        if not found:
            break
        i, w, who = found
        if verbose:
            print(f"  [hazard {name}] +{w} before line {i}: '{lines[i].strip()}'  after '{who.text.strip()}'")
        nops = []
        while w > 0:
            k = min(w, 16)
            nops.append(f"  s_nop {k-1}")
            w -= k
        lines = lines[:i] + nops + lines[i:]
        total += 1
    return lines


class Asm:
    def __init__(self, name):
        self.name = name
        self.lines = []
        self.uid = 0

    def __call__(self, s):
        for l in s.split("\n"):
            l = l.rstrip()
            if l.strip():
                self.lines.append(l if l.strip().endswith(":") and not l.startswith(" ") else "  " + l.strip())

    def label(self, n):
        self.lines.append(f"{n}:")

    def newlabel(self, stem):
        self.uid += 1
        return f"L_{self.name}_{stem}_{self.uid}"

    def srd(self, s, base, nbytes, add=None):
        if add is None:
            self(f"s_mov_b32 s{s}, s{base}")
            self(f"s_and_b32 s{s+1}, s{base+1}, 0xffff")
        else:
            self(f"s_add_u32 s{s}, s{base}, {add}")
            self(f"s_addc_u32 s{s+1}, s{base+1}, 0")
            self(f"s_and_b32 s{s+1}, s{s+1}, 0xffff")
        self(f"s_mov_b32 s{s+2}, {nbytes}")
        self(f"s_mov_b32 s{s+3}, 0x20000")

    def loginit(self):
        if os.environ.get("LOG"):
            self("s_mov_b32 s83, 0")

    def rstamp(self, i):
        if DEBUG and os.environ.get("FREQ"):
            self(f"s_memrealtime s[{84+2*i}:{85+2*i}]")
            self("s_waitcnt lgkmcnt(0)")

    def stamp(self, i):
        if DEBUG and os.environ.get("FREQ") and i in (5, 6):
            return
        if DEBUG:
            self(f"{'s_memtime' if os.environ.get('KDEBUG') == '2' else 's_memrealtime'} s[{84+2*i}:{85+2*i}]")
            self("s_waitcnt lgkmcnt(0)")

    def log(self, vreg):
        if os.environ.get("LOG"):
            self("s_memtime s[100:101]")
            self("s_waitcnt lgkmcnt(0)")
            self("s_mov_b32 s82, m0")
            self("s_mov_b32 m0, s83")
            self(f"v_writelane_b32 v{vreg}, s100, m0")
            self("s_mov_b32 m0, s82")
            self("s_mov_b32 s82, exec_lo")
            self("s_cselect_b32 s82, 1, 0")
            self("s_add_u32 s83, s83, 1")
            self("s_cmp_lg_u32 s82, 0")

    def endpgm(self, kidx, swave, wsptr=32, logreg=None):
        if DEBUG:
            self.stamp(7)
            if logreg is not None and os.environ.get("LOG"):
                self("s_mov_b64 exec, -1")
                self("v_mbcnt_lo_u32_b32 v6, -1, 0")
                self("v_mbcnt_hi_u32_b32 v6, -1, v6")
                self("v_lshlrev_b32 v6, 2, v6")
                self(f"s_lshl_b32 s82, s2, 3")
                self(f"s_add_u32 s82, s82, s{swave}")
                self(f"s_lshl_b32 s82, s82, 8")
                self(f"s_add_u32 s82, s82, {OFF_DBG + 0x100000 + kidx * 0x80000}")
                self.srd(76, wsptr, OFF_DBG + 0x400000)
                self(f"buffer_store_dword v{logreg}, v6, s[76:79], s82 offen")
            self("s_mov_b64 exec, 1")
            for i in range(8):
                self(f"v_mov_b32 v{8+i}, s{84+2*i}")
            self(f"s_lshl_b32 s84, s2, 3")
            self(f"s_add_u32 s84, s84, s{swave}")
            self(f"s_lshl_b32 s84, s84, 5")
            self(f"s_add_u32 s84, s84, {OFF_DBG + kidx * 65536}")
            self("v_mov_b32 v7, 0")
            self.srd(88, wsptr, OFF_DBG + 4 * 65536)
            self("buffer_store_dwordx4 v[8:11], v7, s[88:91], s84 offen")
            self("buffer_store_dwordx4 v[12:15], v7, s[88:91], s84 offen offset:16")
        self("s_endpgm")

    def finish(self, verbose=True):
        return fix_hazards(self.lines, verbose, self.name)


def kernel_text(name, lines):
    return f".globl {name}\n.p2align 8\n.type {name},@function\n{name}:\n" + "\n".join(lines) + "\n"


def kd_text(name, nv, acc, ns=102):
    return f""".p2align 6
.amdhsa_kernel {name}
  .amdhsa_next_free_vgpr {nv}
  .amdhsa_next_free_sgpr {ns}
  .amdhsa_accum_offset {acc}
  .amdhsa_group_segment_fixed_size 0
  .amdhsa_kernarg_size 104
  .amdhsa_user_sgpr_count 2
  .amdhsa_user_sgpr_kernarg_segment_ptr 1
  .amdhsa_system_sgpr_workgroup_id_x 1
  .amdhsa_float_denorm_mode_32 3
.end_amdhsa_kernel
"""
```

```python
from asmlib import Asm
from layout import *
import math, os
AV = os.environ.get('AV', 'r331_late')
FUSED = not os.environ.get('NOFUSE')
ROT = 'rot' in AV
LAA = int(os.environ.get('LAA', '2'))
SC = os.environ.get('ASC', 'sc1')

SLOT = 36864
WOFF = 20480
TR_OFF = 4 * SLOT
STAT_OFF = TR_OFF + 8192
CS_OFF = STAT_OFF + 1920
ONE_OFF = CS_OFF + 512
LDS_A = ONE_OFF + 16
NWG_A = 248

C_Q = 20 ** -0.5 * math.log2(math.e)
C1 = -2.0 * math.sqrt(2.0 / math.pi) * math.log2(math.e)
C2 = C1 * 0.044715

X, WQ, WK, WV, WO, BX, WIN, WSP = 8, 10, 12, 14, 16, 18, 20, 22
BSP, WOUT, OUT, DBG, WS = 24, 26, 28, 30, 32
sL, sRG, sCG, sWV = 34, 35, 36, 37
SRD_X, SRD_W, SRD_WS, SRD_T = 40, 44, 48, 52


def load_args(a):
    a("s_load_dwordx16 s[8:23], s[0:1], 0")
    a("s_load_dwordx8 s[24:31], s[0:1], 64")
    a("s_load_dwordx2 s[32:33], s[0:1], 96")


def gen():
    a = Asm("ka")
    a.stamp(0)
    a.loginit()
    load_args(a)
    a(f"""
    s_cmp_ge_u32 s2, {NWG_A}
    s_cbranch_scc1 L_ka_end
    v_lshrrev_b32 v1, 6, v0
    s_and_b32 s34, s2, 7
    s_lshr_b32 s35, s2, 3
    s_mul_i32 s34, s34, 31
    s_add_u32 s{sL}, s34, s35
    v_readfirstlane_b32 s{sWV}, v1
    s_cmp_ge_u32 s{sL}, 247
    s_cbranch_scc1 L_ka_end
    v_and_b32 v0, 63, v0
    s_mul_i32 s38, s{sL}, 1009
    s_lshr_b32 s38, s38, 16
    s_mul_i32 s39, s38, 65
    s_sub_u32 s39, s{sL}, s39
    s_mul_i32 s{sRG}, s39, 205
    s_lshr_b32 s{sRG}, s{sRG}, 10
    s_sub_u32 s38, s38, s{sRG}
    s_mul_i32 s38, s38, 5
    s_add_u32 s{sCG}, s38, s39
    s_sub_u32 s38, s{sL}, 195
    s_lshr_b32 s39, s38, 2
    s_and_b32 s38, s38, 3
    s_add_u32 s38, s38, 15
    s_cmp_ge_u32 s{sL}, 195
    s_cselect_b32 s{sRG}, s39, s{sRG}
    s_cselect_b32 s{sCG}, s38, s{sCG}
    s_cmp_lt_u32 s{sWV}, 4
    s_cbranch_scc1 L_ka_compute
    """)
    loader(a)
    compute(a)
    a.label("L_ka_end")
    a("s_endpgm")
    return a.finish()


def loader(a):
    sLW, sP, sSW, sCW, sXo, sWo, sSlot, sC, sT, sT2, sONE = 56, 57, 58, 59, 60, 61, 62, 63, 64, 65, 66
    sMX, sMW, sRS = 67, 68, 69
    VX = [4, 5, 6, 7, 8]
    VW = [9, 10, 11, 12]
    VS = 13
    GA = [16 + i for i in range(6)]
    G = 24
    D = 40
    a(f"""
    s_setprio {os.environ.get("LPRIO", "3")}
    s_sub_u32 s{sLW}, s{sWV}, 4
    v_lshrrev_b32 v1, 3, v0
    v_and_b32 v2, 7, v0
    v_lshrrev_b32 v3, 4, v0
    s_lshr_b32 s{sT}, s{sLW}, 1
    s_lshl_b32 s{sP}, s{sCG}, 1
    s_add_u32 s{sP}, s{sP}, s{sT}
    s_and_b32 s{sT2}, s{sLW}, 1
    s_lshl_b32 s{sT}, s{sT2}, 2
    v_or_b32 v14, s{sT}, v3
    v_xor_b32 v14, v14, v2
    v_lshlrev_b32 v14, 4, v14
    s_mul_i32 s{sT}, s{sLW}, 40
    v_add_u32 v15, s{sT}, v1
    v_mul_u32_u24 v15, 1280, v15
    v_add_u32 v{VX[0]}, v15, v14
    v_xor_b32 v14, 64, v14
    v_add_u32 v15, v15, v14
    v_add_u32 v{VX[1]}, {10240 - 1024}, v15
    v_add_u32 v{VX[2]}, {2 * (10240 - 1024)}, v{VX[0]}
    v_add_u32 v{VX[3]}, {3 * (10240 - 1024)}, v15
    v_add_u32 v{VX[4]}, {4 * 10240}, v{VX[0]}
    s_mul_i32 s{sMX}, s{sLW}, 5120
    s_lshl_b32 s{sMW}, s{sLW}, 12
    s_add_u32 s{sMW}, s{sMW}, {WOFF}
    s_mul_i32 s{sT}, s{sRG}, {160 * 1280}
    s_sub_u32 s{sRS}, {2048 * 1280}, s{sT}
    s_waitcnt lgkmcnt(0)
    """)
    a.srd(SRD_X, X, f"s{sRS}", add=f"s{sT}")
    a(f"""
    s_cmp_eq_u32 s{sP}, 10
    s_cbranch_scc1 L_ka_ld_kv
    s_sub_u32 s{sT}, s{sP}, 11
    s_cmp_lt_u32 s{sP}, 10
    s_cselect_b32 s{sT}, s{sP}, s{sT}
    s_cselect_b32 s{SRD_W}, s{WQ}, s{WIN}
    s_cselect_b32 s{SRD_W+1}, s{WQ+1}, s{WIN+1}
    s_movk_i32 s{sSW}, 3456
    s_cselect_b32 s{sSW}, 1280, s{sSW}
    s_lshl_b32 s{sT}, s{sT}, 7
    s_add_u32 s{SRD_W}, s{SRD_W}, s{sT}
    s_addc_u32 s{SRD_W+1}, s{SRD_W+1}, 0
    s_mul_i32 s{SRD_W+2}, s{sSW}, 640
    s_sub_u32 s{SRD_W+2}, s{SRD_W+2}, s{sT}
    s_lshl_b32 s{sCW}, s{sSW}, 6
    s_lshl_b32 s{sT}, s{sT2}, 5
    v_add_u32 v15, s{sT}, v1
    v_mul_lo_u32 v15, v15, s{sSW}
    v_and_b32 v14, 1, v3
    v_lshlrev_b32 v14, 2, v14
    v_xor_b32 v14, v14, v2
    v_lshl_add_u32 v{VW[0]}, v14, 4, v15
    s_lshl_b32 s{sT}, s{sSW}, 3
    s_sub_u32 s{sT}, s{sT}, 1024
    v_add_u32 v{VW[1]}, s{sT}, v{VW[0]}
    v_add_u32 v{VW[2]}, s{sT}, v{VW[1]}
    v_add_u32 v{VW[3]}, s{sT}, v{VW[2]}
    s_branch L_ka_ld_go
    L_ka_ld_kv:
    s_cmp_eq_u32 s{sT2}, 0
    s_cselect_b32 s{SRD_W}, s{WK}, s{WV}
    s_cselect_b32 s{SRD_W+1}, s{WK+1}, s{WV+1}
    s_mov_b32 s{SRD_W+2}, 25600
    s_mov_b32 s{sCW}, 2560
    v_lshlrev_b32 v{VW[0]}, 4, v0
    v_lshlrev_b32 v{VW[1]}, 4, v0
    v_lshlrev_b32 v{VW[2]}, 4, v0
    v_lshlrev_b32 v{VW[3]}, 4, v0
    L_ka_ld_go:
    s_and_b32 s{SRD_W+1}, s{SRD_W+1}, 0xffff
    s_mov_b32 s{SRD_W+3}, 0x20000
    s_mov_b32 s{sXo}, 0
    s_mov_b32 s{sWo}, 0
    s_mov_b32 s{sSlot}, 0
    """)

    def issue():
        out = [f"s_add_u32 m0, s{sSlot}, s{sMX}", f"s_add_u32 s{sT}, s{sSlot}, s{sMW}"]
        out += [f"buffer_load_dwordx4 v{VX[i]}, s[{SRD_X}:{SRD_X+3}], s{sXo} offen offset:{1024*i} lds" for i in range(4)]
        out += ["s_add_u32 m0, m0, 4096", f"s_add_u32 s{sSlot}, s{sSlot}, {SLOT}",
                f"buffer_load_dwordx4 v{VX[4]}, s[{SRD_X}:{SRD_X+3}], s{sXo} offen lds",
                f"s_mov_b32 m0, s{sT}", f"s_add_u32 s{sXo}, s{sXo}, 128"]
        out += [f"buffer_load_dwordx4 v{VW[i]}, s[{SRD_W}:{SRD_W+3}], s{sWo} offen offset:{1024*i} lds" for i in range(4)]
        out += [f"s_add_u32 s{sWo}, s{sWo}, s{sCW}"]
        if ROT:
            out += [f"s_cmp_eq_u32 s{sXo}, 1280", f"s_cselect_b32 s{sXo}, 0, s{sXo}", f"s_cselect_b32 s{sWo}, 0, s{sWo}"]
        return out

    if ROT:
        a(f"""
        s_mul_i32 s{sT}, s{sRG}, 3
        s_lshl_b32 s{sT2}, s{sCG}, 1
        s_add_u32 s{sT}, s{sT}, s{sT2}
        s_mul_i32 s{sT2}, s{sT}, 205
        s_lshr_b32 s{sT2}, s{sT2}, 11
        s_mul_i32 s{sT2}, s{sT2}, 10
        s_sub_u32 s{sT}, s{sT}, s{sT2}
        s_lshl_b32 s{sXo}, s{sT}, 7
        s_mul_i32 s{sWo}, s{sT}, s{sCW}
        """)
    a("L_ka_ld_pro:")
    for x in issue():
        a(x)
    a(f"""
    s_cmp_lt_u32 s{sSlot}, {LAA*SLOT}
    s_cbranch_scc1 L_ka_ld_pro
    """)
    a.stamp(1)
    sU, sKAP, sOP = 70, 71, 72
    a(f"""
    s_lshl_b32 s{sU}, s{sL}, 2
    s_add_u32 s{sU}, s{sU}, s{sLW}
    s_min_u32 s{sT}, s{sU}, 939
    s_mul_i32 s{sKAP}, s{sT}, 6554
    s_lshr_b32 s{sKAP}, s{sKAP}, 16
    s_mul_i32 s{sOP}, s{sKAP}, 10
    s_sub_u32 s{sOP}, s{sT}, s{sOP}
    s_sub_u32 s{sT}, s{sKAP}, 40
    s_cmp_lt_u32 s{sKAP}, 40
    s_cselect_b32 s{sT}, s{sKAP}, s{sT}
    s_cselect_b32 s{SRD_T}, s{WO}, s{WOUT}
    s_cselect_b32 s{SRD_T+1}, s{WO+1}, s{WOUT+1}
    s_mov_b32 s{SRD_T+2}, {864*1280}
    s_cselect_b32 s{SRD_T+2}, {640*1280}, s{SRD_T+2}
    s_and_b32 s{SRD_T+1}, s{SRD_T+1}, 0xffff
    s_mov_b32 s{SRD_T+3}, 0x20000
    s_mul_i32 s{sT}, s{sT}, {16*1280}
    s_lshl_b32 s{sT2}, s{sOP}, 7
    s_add_u32 s{sT}, s{sT}, s{sT2}
    v_and_b32 v14, 1, v3
    v_lshlrev_b32 v14, 2, v14
    v_xor_b32 v14, v14, v2
    v_mul_u32_u24 v15, 1280, v1
    v_lshl_add_u32 v14, v14, 4, v15
    v_add_u32 v15, {10240 - 1024}, v14
    s_lshl_b32 s{sT2}, s{sLW}, 11
    s_add_u32 m0, s{sT2}, {TR_OFF}
    s_mov_b32 s{sONE}, 0x3f803f80
    buffer_load_dwordx4 v14, s[{SRD_T}:{SRD_T+3}], s{sT} offen lds
    buffer_load_dwordx4 v15, s[{SRD_T}:{SRD_T+3}], s{sT} offen offset:1024 lds
    v_and_b32 v14, 15, v0
    s_mul_i32 s{sT}, s{sLW}, 40
    v_mov_b32 v36, s{sONE}
    v_mov_b32 v37, s{sONE}
    v_mov_b32 v38, s{sONE}
    v_mov_b32 v39, s{sONE}
    v_mov_b32 v22, {ONE_OFF}
    """)
    for t in range(3):
        a(f"""
        v_add_u32 v15, {15*t}, v14
        v_min_u32 v15, 39, v15
        v_add_u32 v15, s{sT}, v15
        v_bfe_u32 v23, v15, 1, 3
        v_xor_b32 v23, v23, v3
        v_lshlrev_b32 v23, 4, v23
        v_lshl_add_u32 v{GA[2*t]}, v15, 7, v23
        v_xor_b32 v{GA[2*t+1]}, 64, v{GA[2*t]}
        """)
    a("ds_write_b128 v22, v[36:39]")
    a("s_mov_b32 s76, 0x80008000\ns_mov_b32 s77, 0x80008000\ns_not_b64 s[78:79], s[76:77]\ns_mov_b64 exec, s[76:77]")
    for r in GA:
        a(f"v_mov_b32 v{r}, v22")
    a("s_mov_b64 exec, -1")
    for r in range(G, G + 12):
        a(f"v_mov_b32 v{r}, 0")
    a.srd(SRD_WS, WS, WS_END)
    a(f"""
    s_mov_b32 s{sC}, 0
    s_mov_b32 s73, {SLOT}
    L_ka_ld_loop:
    """)
    a.log(127)
    a(f"s_waitcnt vmcnt({9*(LAA-1)})")
    a.log(127)
    a("s_barrier")
    a.log(127)
    for i in range(6):
        a(f"ds_read_b128 v[{D+4*i}:{D+4*i+3}], v{GA[i]}")
    a(f"""
    s_cmp_ge_u32 s{sC}, {0 if 'noload' in AV else 10-LAA}
    s_cselect_b32 s{SRD_X+2}, 0, s{SRD_X+2}
    s_cselect_b32 s{SRD_W+2}, 0, s{SRD_W+2}
    s_cmp_eq_u32 s{sSlot}, {4*SLOT}
    s_cselect_b32 s{sSlot}, 0, s{sSlot}
    """)
    st = [f"v_mfma_f32_16x16x32_bf16 v[{G+4*(i>>1)}:{G+4*(i>>1)+3}], v[{D+4*i}:{D+4*i+3}], v[{D+4*i}:{D+4*i+3}], v[{G+4*(i>>1)}:{G+4*(i>>1)+3}]" for i in (0, 2, 4, 1, 3, 5)]
    if "nostat" in AV:
        st = []
    nload = 0
    for x in issue():
        if "nodma" in AV and "buffer_load" in x:
            continue
        a(x)
        if "buffer_load" in x:
            nload += 1
            if "late" not in AV:
                if nload == 3:
                    a("s_waitcnt lgkmcnt(0)")
                if nload >= 3 and st:
                    a(st.pop(0))
    a("s_waitcnt lgkmcnt(0)")
    for y in st:
        a(y)
    a(f"""
    s_and_b32 s{sT}, s{sC}, 3
    s_cmp_eq_u32 s{sT}, 3
    s_cselect_b32 s{sT}, {-3*SLOT & 0xffffffff}, s73
    s_add_u32 s{sC}, s{sC}, 1
    s_mov_b64 exec, s[78:79]
    """)
    for r in GA:
        a(f"v_add_u32 v{r}, s{sT}, v{r}")
    a(f"""
    s_mov_b64 exec, -1
    s_cmp_lt_u32 s{sC}, 10
    s_cbranch_scc1 L_ka_ld_loop
    """)
    a.stamp(3)
    a(f"""
    v_lshlrev_b32 v15, 8, v3
    v_lshl_add_u32 v15, v14, 2, v15
    v_add_u32 v15, s{sMX}, v15
    v_min_u32 v4, 39, v0
    v_mul_u32_u24 v5, 4370, v4
    v_lshrrev_b32 v5, 16, v5
    v_mul_u32_u24 v6, 15, v5
    v_sub_u32 v6, v4, v6
    v_lshlrev_b32 v5, 10, v5
    v_add_u32 v5, s{sMX}, v5
    v_mul_u32_u24 v7, 68, v6
    v_add_u32 v7, v7, v5
    v_lshl_add_u32 v5, v6, 2, v5
    s_waitcnt vmcnt(0)
    """)
    for t in range(3):
        for r in range(4):
            a(f"ds_write_b32 v15, v{G+4*t+r} offset:{1024*t + 64*r}")
    a("""
    ds_read_b32 v16, v5 offset:960
    ds_read_b32 v26, v7
    s_waitcnt lgkmcnt(0)
    """)
    SUM, SQ = [16], [26]
    m, q = SUM[0], SQ[0]
    a(f"""
    v_mul_f32 v{m}, {f2u(1/640):#x}, v{m}
    v_mul_f32 v{q}, {f2u(1/640):#x}, v{q}
    s_mul_i32 s{sT}, s{sLW}, 40
    v_fma_f32 v{q}, -v{m}, v{m}, v{q}
    v_max_f32 v{q}, 0, v{q}
    v_add_lshl_u32 v3, v4, s{sT}, 2
    v_cvt_pk_bf16_f32 v{q}, v{q}, v{m}
    v_add_u32 v3, {STAT_OFF}, v3
    v_and_b32 v{m}, 0xffff0000, v{q}
    v_lshlrev_b32 v{q}, 16, v{q}
    v_xor_b32 v{m}, 0x80000000, v{m}
    v_add_f32 v{q}, {f2u(1e-5):#x}, v{q}
    v_cvt_pk_bf16_f32 v{q}, v{q}, v{q}
    v_lshlrev_b32 v{q}, 16, v{q}
    v_sqrt_f32 v{q}, v{q}
    v_cvt_pk_bf16_f32 v{q}, v{q}, v{q}
    v_lshlrev_b32 v{q}, 16, v{q}
    v_rcp_f32 v17, v{q}
    ds_write_b32 v3, v{m}
    ds_write_b32 v3, v{q} offset:1280
    ds_write_b32 v3, v17 offset:640
    s_waitcnt vmcnt(0) lgkmcnt(0)
    s_barrier
    """)
    if "pf" in AV:
        a.srd(SRD_X, WSP, 2048 * 4096)
        a(f"""
        s_lshr_b32 s{sT}, s2, 3
        s_lshl_b32 s{sT}, s{sT}, 2
        s_add_u32 s{sT}, s{sT}, s{sLW}
        s_and_b32 s{sT2}, s2, 7
        s_lshl_b32 s{sT2}, s{sT2}, 7
        s_add_u32 s{sT2}, s{sT2}, s{sT}
        s_lshl_b32 s{sT2}, s{sT2}, 13
        v_lshlrev_b32 v4, 7, v0
        buffer_load_dword v60, v4, s[{SRD_X}:{SRD_X+3}], s{sT2} offen
        s_cmp_ge_u32 s{sT}, 4
        s_cbranch_scc1 L_ka_ld_nopf
        s_add_u32 s{sT2}, s{sT2}, {124*8192}
        buffer_load_dword v61, v4, s[{SRD_X}:{SRD_X+3}], s{sT2} offen
        L_ka_ld_nopf:
        """)
    a(f"""
    s_cmp_ge_u32 s{sU}, 940
    s_cbranch_scc1 L_ka_ld_notr
    v_lshrrev_b32 v4, 5, v0
    v_bfe_u32 v5, v0, 2, 2
    v_lshl_add_u32 v4, v4, 2, v5
    v_lshlrev_b32 v4, 7, v4
    v_bfe_u32 v5, v0, 4, 1
    v_lshl_add_u32 v4, v5, 5, v4
    v_and_b32 v5, 3, v0
    v_lshl_add_u32 v4, v5, 3, v4
    v_bfe_u32 v5, v0, 3, 1
    v_lshl_add_u32 v4, v5, 6, v4
    s_lshl_b32 s{sT2}, s{sLW}, 11
    s_add_u32 s{sT2}, s{sT2}, {TR_OFF}
    v_add_u32 v4, s{sT2}, v4
    v_xor_b32 v5, 64, v4
    ds_read_b64_tr_b16 v[32:33], v4
    ds_read_b64_tr_b16 v[34:35], v4 offset:1024
    ds_read_b64_tr_b16 v[36:37], v5
    ds_read_b64_tr_b16 v[38:39], v5 offset:1024
    s_mul_i32 s{sT}, s{sOP}, {2*94}
    s_add_u32 s{sT}, s{sT}, s{sKAP}
    s_lshl_b32 s{sT}, s{sT}, 10
    s_add_u32 s{sT}, s{sT}, {OFF_WT}
    s_add_u32 s{sT2}, s{sT}, {94*1024}
    v_lshlrev_b32 v6, 4, v0
    s_waitcnt lgkmcnt(2)
    buffer_store_dwordx4 v[32:35], v6, s[{SRD_WS}:{SRD_WS+3}], s{sT} offen {SC}
    s_waitcnt lgkmcnt(0)
    buffer_store_dwordx4 v[36:39], v6, s[{SRD_WS}:{SRD_WS+3}], s{sT2} offen {SC}
    L_ka_ld_notr:
    s_cmp_ge_u32 s{sU}, {96 if FUSED else 36}
    s_cbranch_scc1 L_ka_fin
    v_lshlrev_b32 v6, 4, v0
    v_mov_b32 v40, 0
    v_mov_b32 v41, 0
    v_mov_b32 v42, 0
    v_mov_b32 v43, 0
    s_lshl_b32 s{sT}, s{sU}, 10
    s_add_u32 s{sT}, s{sT}, {OFF_FZ if FUSED else OFF_CNT}
    buffer_store_dwordx4 v[40:43], v6, s[{SRD_WS}:{SRD_WS+3}], s{sT} offen {SC}
    s_branch L_ka_fin
    """)


ACC = 128
T = 16
E = 32
CS = 48
NM, RI, SD = 96, 101, 106


def compute(a):
    sP, sB, sTY, sBLK, sC, sT, sT2, sONE, sO1, sO2, sNRB = 56, 57, 58, 59, 60, 61, 62, 63, 64, 65, 66
    XA = [2, 3, 4, 5]
    WA = 6
    SEL, CSD = 112, 116
    F = [(64, 68), (88, 92)]
    a("L_ka_compute:")
    a(f"""
    s_lshr_b32 s{sT}, s{sWV}, 1
    s_and_b32 s{sB}, s{sWV}, 1
    s_lshl_b32 s{sP}, s{sCG}, 1
    s_add_u32 s{sP}, s{sP}, s{sT}
    v_lshrrev_b32 v1, 5, v0
    v_and_b32 v9, 31, v0
    v_bfe_u32 v10, v0, 1, 3
    v_xor_b32 v10, v10, v1
    v_lshlrev_b32 v10, 4, v10
    v_lshl_add_u32 v{XA[0]}, v9, 7, v10
    v_xor_b32 v{XA[1]}, 32, v{XA[0]}
    v_xor_b32 v{XA[2]}, 64, v{XA[0]}
    v_xor_b32 v{XA[3]}, 96, v{XA[0]}
    v_bfe_u32 v10, v0, 2, 2
    v_lshl_add_u32 v10, v1, 3, v10
    v_bfe_u32 v11, v0, 4, 1
    v_lshlrev_b32 v11, 5, v11
    v_and_b32 v12, 3, v0
    v_lshl_add_u32 v11, v12, 3, v11
    s_lshl_b32 s{sT}, s{sT}, 13
    s_add_u32 s{sT}, s{sT}, {WOFF}
    s_mov_b32 s{sONE}, 0x3f803f80
    s_mov_b32 s{sC}, 0
    s_mov_b32 s73, {SLOT}
    """)
    for i in range(80):
        a(f"v_mov_b32 v{ACC+i}, 0")
    for i in range(8):
        a(f"v_mov_b32 v{SEL+i}, 0")
    a("s_mov_b32 exec_lo, 0x00020001")
    a("s_mov_b32 exec_hi, 0x00020001")
    for i in range(4):
        a(f"v_mov_b32 v{SEL+i}, s{sONE}")
    a("s_mov_b64 exec, -1")
    a(f"""
    s_waitcnt lgkmcnt(0)
    s_lshl_b32 s{sBLK}, s{sP}, 1
    s_add_u32 s{sBLK}, s{sBLK}, s{sB}
    s_cmp_eq_u32 s{sP}, 10
    s_cbranch_scc1 L_ka_c_kv
    v_bfe_u32 v12, v0, 3, 1
    v_xor_b32 v12, s{sB}, v12
    v_lshl_add_u32 v11, v12, 6, v11
    v_lshl_add_u32 v{WA}, v10, 7, v11
    v_add_u32 v{WA}, s{sT}, v{WA}
    """)

    def reads(f, kp, sk, sr):
        w, x = F[f]
        r = [f"ds_read_b64_tr_b16 v[{w}:{w+1}], v{WA} offset:{kp*sk}",
             f"ds_read_b64_tr_b16 v[{w+2}:{w+3}], v{WA} offset:{kp*sk+sr}"]
        for rb in range(5):
            r.append(f"ds_read_b128 v[{x+4*rb}:{x+4*rb+3}], v{XA[kp]} offset:{4096*rb}")
        return r

    def mainloop(tag, sk, sr):
        a.stamp(1)
        a("s_barrier")
        a.stamp(2)
        a.rstamp(5)
        for r in reads(0, 0, sk, sr):
            a(r)
        a(f"v_add_u32 v{XA[0]}, s73, v{XA[0]}")
        a(f"L_ka_c_loop{tag}:")
        for kp in range(4):
            f = kp & 1
            w, x = F[f]
            nxt = reads(f ^ 1, (kp + 1) & 3, sk, sr)
            mf = [f"v_mfma_f32_32x32x16_bf16 v[{ACC+16*rb}:{ACC+16*rb+15}], v[{w}:{w+3}], v[{x+4*rb}:{x+4*rb+3}], v[{ACC+16*rb}:{ACC+16*rb+15}]" for rb in range(5)]
            cs = f"v_mfma_f32_16x16x32_bf16 v[{CSD}:{CSD+3}], v[{SEL}:{SEL+3}], v[{w}:{w+3}], v[{CSD}:{CSD+3}]"
            if "nox" in AV: nxt = [y if "b128" not in y else "s_nop 0" for y in nxt]
            if "now" in AV: nxt = [y if "_tr_" not in y else "s_nop 0" for y in nxt]
            if "nocs" in AV: cs = "s_nop 0"
            upd = lambda r, s: f"v_add_u32 v{r}, s{s}, v{r}"
            if kp == 0:
                extra = [f"s_and_b32 s{sT2}, s{sC}, 3", f"s_cmp_eq_u32 s{sT2}, 3", f"s_cselect_b32 s{sT}, {-3*SLOT & 0xffffffff}, s73",
                         f"s_cmp_eq_u32 s{sT2}, 2", f"s_cselect_b32 s{sT2}, {-3*SLOT & 0xffffffff}, s73", f"s_add_u32 s{sC}, s{sC}, 1", upd(XA[1], sT)]
            elif kp == 1:
                extra = [upd(XA[2], sT)]
            elif kp == 2:
                extra = [upd(XA[3], sT), upd(WA, sT)]
            else:
                extra = [upd(XA[0], sT2), f"s_cmp_lt_u32 s{sC}, 10"]
            if kp == 3:
                a("s_waitcnt lgkmcnt(0)")
                a(mf[0])
                a.log(127)
                a("s_barrier")
                a.log(127)
                plan = [nxt[0:2], nxt[2:4], nxt[4:6], nxt[6:7] + extra, [cs]]
                if "r331" in AV:
                    plan = [nxt[0:3], nxt[3:6], nxt[6:7], extra, [cs]]
                for rb in range(5):
                    if rb:
                        a(mf[rb])
                    for r in plan[rb]:
                        a(r)
            else:
                waits = [2, None, None, 6, None]
                plan = [nxt[0:2], nxt[2:4], nxt[4:6], nxt[6:7] + extra, [cs]]
                if "r331" in AV:
                    waits = [4, 6, 8, 8, 7]
                    plan = [nxt[0:3], nxt[3:6], nxt[6:7], extra, [cs]]
                for rb in range(5):
                    if waits[rb] is not None:
                        a(f"s_waitcnt lgkmcnt({waits[rb]})")
                    a(mf[rb])
                    for r in plan[rb]:
                        a(r)
        a(f"s_cbranch_scc1 L_ka_c_loop{tag}")

    mainloop("n", 2048, 512)
    a(f"""
    s_sub_u32 s{sT}, s{sBLK}, 22
    s_sub_u32 s{sT2}, s{sBLK}, {22+27}
    s_cmp_lt_u32 s{sT}, 27
    s_cselect_b32 s{sTY}, 3, 4
    s_cselect_b32 s{sT}, s{sT}, s{sT2}
    s_cmp_lt_u32 s{sP}, 10
    s_cselect_b32 s{sTY}, 0, s{sTY}
    s_cselect_b32 s{sBLK}, s{sBLK}, s{sT}
    s_branch L_ka_c_epi
    L_ka_c_kv:
    v_mul_u32_u24 v10, 40, v10
    s_lshl_b32 s{sT2}, s{sB}, 12
    s_add_u32 s{sT}, s{sT}, s{sT2}
    v_add3_u32 v{WA}, v10, v11, s{sT}
    """)
    mainloop("k", 640, 160)
    a(f"s_add_u32 s{sTY}, s{sB}, 1")
    a("L_ka_c_epi:")
    a.stamp(3)
    a.rstamp(6)
    a.srd(SRD_WS, WS, WS_END)
    a(f"""
    s_lshl_b32 s{sT}, s{sWV}, 7
    s_add_u32 s{sT}, s{sT}, {CS_OFF}
    v_lshl_add_u32 v10, v9, 2, s{sT}
    v_lshl_add_u32 v11, v1, 4, s{sT}
    v_lshlrev_b32 v12, 2, v9
    v_add_u32 v12, {STAT_OFF}, v12
    s_waitcnt lgkmcnt(0)
    s_mov_b64 exec, 0xffff
    ds_write_b32 v10, v{CSD}
    ds_write_b32 v10, v{CSD+1} offset:64
    s_mov_b64 exec, -1
    """)
    for rb in range(5):
        a(f"ds_read_b32 v{NM+rb}, v12 offset:{128*rb}")
        a(f"ds_read_b32 v{RI+rb}, v12 offset:{128*rb+640}")
        a(f"ds_read_b32 v{SD+rb}, v12 offset:{128*rb+1280}")
    for q in range(4):
        a(f"ds_read_b128 v[{CS+4*q}:{CS+4*q+3}], v11 offset:{32*q}")
    a(f"""
    v_lshlrev_b32 v13, 4, v0
    v_lshlrev_b32 v14, 3, v0
    v_lshlrev_b32 v15, 3, v9
    s_mul_i32 s{sT}, s{sRG}, 5
    s_cmp_eq_u32 s{sRG}, 12
    s_cselect_b32 s{sNRB}, 4, 5
    s_cmp_ge_u32 s{sTY}, 3
    s_cbranch_scc1 L_ka_e_z
    s_cmp_eq_u32 s{sTY}, 0
    s_cbranch_scc1 L_ka_e_q
    s_mul_i32 s{sO1}, s{sT}, {KV_REC}
    s_add_u32 s{sO1}, s{sO1}, {OFF_KV}
    s_branch L_ka_e_go
    L_ka_e_q:
    s_mul_i32 s{sO1}, s{sT}, 160
    s_lshl_b32 s{sT2}, s{sBLK}, 3
    s_add_u32 s{sO1}, s{sO1}, s{sT2}
    s_lshl_b32 s{sO1}, s{sO1}, 8
    s_branch L_ka_e_go
    L_ka_e_z:
    s_mul_i32 s{sO1}, s{sT}, 27
    s_add_u32 s{sO1}, s{sO1}, s{sBLK}
    s_lshl_b32 s{sO1}, s{sO1}, 11
    s_cmp_eq_u32 s{sTY}, 3
    s_mov_b32 s{sT2}, {OFF_ZR}
    s_cselect_b32 s{sT2}, {OFF_Z1}, s{sT2}
    s_add_u32 s{sO1}, s{sO1}, s{sT2}
    s_lshl_b32 s{sO2}, s{sBLK}, 6
    s_add_u32 s{sO2}, s{sO2}, s{sT}
    s_lshl_b32 s{sO2}, s{sO2}, 8
    s_add_u32 s{sO2}, s{sO2}, {OFF_ST}
    L_ka_e_go:
    s_waitcnt lgkmcnt(0)
    """)
    for rb in range(5):
        if rb == 4:
            a(f"s_cmp_eq_u32 s{sNRB}, 4")
            a("s_cbranch_scc1 L_ka_fin")
        if rb < 2:
            a.stamp(4 + rb)
        nm = NM + rb
        pair, hi = (nm, 0) if nm % 2 == 0 else (nm - 1, 1)
        for j in range(8):
            a(f"v_pk_fma_f32 v[{T+2*j}:{T+2*j+1}], v[{CS+2*j}:{CS+2*j+1}], v[{pair}:{pair+1}], v[{ACC+16*rb+2*j}:{ACC+16*rb+2*j+1}] op_sel:[0,{hi},0] op_sel_hi:[1,{hi},1]")
        a(f"v_mov_b32 v2, v{RI+rb}")
        a(f"v_mov_b32 v4, v{SD+rb}")
        a("s_call_b64 s[70:71], L_ka_body")
    a("L_ka_fin:")
    a.endpgm(0, sWV, logreg=127)
    a(f"""
    L_ka_body:
    s_cmp_ge_u32 s{sTY}, 3
    s_cbranch_scc0 L_ka_b_lin
    v_mul_f32 v6, {f2u(C1):#x}, v2
    v_mul_f32 v3, v2, v2
    v_mul_f32 v7, {f2u(C2):#x}, v2
    """)
    for j in range(8):
        a(f"v_pk_mul_f32 v[{E+2*j}:{E+2*j+1}], v[{T+2*j}:{T+2*j+1}], v[{T+2*j}:{T+2*j+1}]")
        if j == 0:
            a("v_mul_f32 v7, v7, v3")
    for j in range(8):
        a(f"v_pk_fma_f32 v[{E+2*j}:{E+2*j+1}], v[{E+2*j}:{E+2*j+1}], v[6:7], v[6:7] op_sel:[0,1,0] op_sel_hi:[1,1,0]")
    for j in range(8):
        a(f"v_pk_mul_f32 v[{E+2*j}:{E+2*j+1}], v[{E+2*j}:{E+2*j+1}], v[{T+2*j}:{T+2*j+1}]")
    for j in range(16):
        a(f"v_exp_f32 v{E+j}, v{E+j}")
    for j in range(8):
        a(f"v_pk_fma_f32 v[{E+2*j}:{E+2*j+1}], v[{E+2*j}:{E+2*j+1}], v[4:5], v[4:5] op_sel_hi:[1,0,0]")
    for j in range(16):
        a(f"v_rcp_f32 v{E+j}, v{E+j}")
    for j in range(8):
        a(f"v_pk_mul_f32 v[{E+2*j}:{E+2*j+1}], v[{E+2*j}:{E+2*j+1}], v[{T+2*j}:{T+2*j+1}]")
    P = 64
    for j in range(8):
        a(f"v_cvt_pk_bf16_f32 v{P+j}, v{E+2*j}, v{E+2*j+1}")
    a(f"""
    buffer_store_dwordx4 v[{P}:{P+3}], v13, s[{SRD_WS}:{SRD_WS+3}], s{sO1} offen {SC}
    buffer_store_dwordx4 v[{P+4}:{P+7}], v13, s[{SRD_WS}:{SRD_WS+3}], s{sO1} offen offset:1024 {SC}
    s_add_u32 s{sO1}, s{sO1}, {27*2048}
    s_cmp_eq_u32 s{sTY}, 3
    s_cbranch_scc1 L_ka_b_ret
    v_pk_mul_f32 v[74:75], v[{E}:{E+1}], v[{E}:{E+1}]
    v_pk_add_f32 v[72:73], v[{E}:{E+1}], v[{E+2}:{E+3}]
    v_pk_fma_f32 v[74:75], v[{E+2}:{E+3}], v[{E+2}:{E+3}], v[74:75]
    """)
    for j in range(2, 8):
        a(f"v_pk_add_f32 v[72:73], v[72:73], v[{E+2*j}:{E+2*j+1}]")
        a(f"v_pk_fma_f32 v[74:75], v[{E+2*j}:{E+2*j+1}], v[{E+2*j}:{E+2*j+1}], v[74:75]")
    a(f"""
    v_add_f32 v72, v72, v73
    v_add_f32 v73, v74, v75
    v_mov_b32 v74, v72
    v_mov_b32 v75, v73
    s_nop 0
    v_permlane32_swap_b32 v72, v74
    v_permlane32_swap_b32 v73, v75
    v_pk_add_f32 v[72:73], v[72:73], v[74:75]
    buffer_store_dwordx2 v[72:73], v15, s[{SRD_WS}:{SRD_WS+3}], s{sO2} offen {SC}
    s_add_u32 s{sO2}, s{sO2}, 256
    L_ka_b_ret:
    s_setpc_b64 s[70:71]
    L_ka_b_lin:
    s_cmp_eq_u32 s{sTY}, 0
    s_cselect_b32 s{sT}, {f2u(C_Q):#x}, 1.0
    v_mul_f32 v2, s{sT}, v2
    """)
    for j in range(8):
        a(f"v_pk_mul_f32 v[{E+2*j}:{E+2*j+1}], v[{T+2*j}:{T+2*j+1}], v[2:3] op_sel_hi:[1,0]")
    for j in range(8):
        a(f"v_cvt_pk_bf16_f32 v{P+j}, v{E+2*j}, v{E+2*j+1}")
    a(f"""
    s_cmp_eq_u32 s{sTY}, 0
    s_cbranch_scc0 L_ka_b_kv
    """)
    for q in range(4):
        a(f"buffer_store_dwordx2 v[{P+2*q}:{P+2*q+1}], v14, s[{SRD_WS}:{SRD_WS+3}], s{sO1} offen offset:{512*q} {SC}")
    a(f"""
    s_add_u32 s{sO1}, s{sO1}, {160*256}
    s_setpc_b64 s[70:71]
    L_ka_b_kv:
    s_cmp_eq_u32 s{sTY}, 1
    s_cbranch_scc0 L_ka_b_v
    s_mov_b32 exec_lo, 0
    v_mov_b32 v{P+4}, s{sONE}
    v_mov_b32 v{P+5}, 0x3f80
    s_mov_b32 exec_lo, -1
    buffer_store_dwordx4 v[{P}:{P+3}], v13, s[{SRD_WS}:{SRD_WS+3}], s{sO1} offen {SC}
    buffer_store_dwordx2 v[{P+4}:{P+5}], v14, s[{SRD_WS}:{SRD_WS+3}], s{sO1} offen offset:3072 {SC}
    s_add_u32 s{sO1}, s{sO1}, {KV_REC}
    s_setpc_b64 s[70:71]
    L_ka_b_v:
    v_lshlrev_b32 v72, 6, v9
    v_lshl_add_u32 v72, v1, 3, v72
    v_bfe_u32 v73, v0, 2, 2
    v_lshl_add_u32 v73, v1, 2, v73
    v_lshlrev_b32 v73, 6, v73
    v_bfe_u32 v74, v0, 4, 1
    v_lshl_add_u32 v73, v74, 5, v73
    v_and_b32 v74, 3, v0
    v_lshl_add_u32 v73, v74, 3, v73
    ds_write_b64 v72, v[{P}:{P+1}]
    ds_write_b64 v72, v[{P+2}:{P+3}] offset:16
    ds_write_b64 v72, v[{P+4}:{P+5}] offset:32
    ds_write_b64 v72, v[{P+6}:{P+7}] offset:48
    s_waitcnt lgkmcnt(0)
    ds_read_b64_tr_b16 v[76:77], v73
    ds_read_b64_tr_b16 v[78:79], v73 offset:512
    ds_read_b64_tr_b16 v[80:81], v73 offset:1024
    ds_read_b64_tr_b16 v[82:83], v73 offset:1536
    s_mov_b32 s72, 0x100000
    s_mov_b32 s73, 0x100000
    s_waitcnt lgkmcnt(0)
    s_mov_b64 exec, s[72:73]
    """)
    for j in range(8):
        a(f"v_mov_b32 v{76+j}, s{sONE}")
    if "vgarb" not in AV:
        a("s_mov_b32 exec_lo, 0xffe00000")
        a("s_mov_b32 exec_hi, 0xffe00000")
        for j in range(8):
            a(f"v_mov_b32 v{76+j}, 0")
    a(f"""
    s_mov_b64 exec, -1
    buffer_store_dwordx4 v[76:79], v13, s[{SRD_WS}:{SRD_WS+3}], s{sO1} offen offset:1024 {SC}
    buffer_store_dwordx4 v[80:83], v13, s[{SRD_WS}:{SRD_WS+3}], s{sO1} offen offset:2048 {SC}
    s_add_u32 s{sO1}, s{sO1}, {KV_REC}
    s_setpc_b64 s[70:71]
    """)


if __name__ == "__main__":
    for L in range(247):
        st = (L * 1009) >> 16
        r = L - 65 * st
        rg = (r * 205) >> 10
        cg = (st - rg) * 5 + r
        if L >= 195:
            rg, cg = (L - 195) >> 2, 15 + ((L - 195) & 3)
        assert 0 <= rg < 13 and 0 <= cg < 19
    for u in range(988):
        assert (u * 6554) >> 16 == u // 10
    l = gen()
    print(len(l), "lines")
```

```python
from asmlib import Asm, OFF_DBG
import os
def gen(back):
    a = Asm("kd")
    a(f"""
    s_load_dwordx4 s[8:11], s[0:1], 88
    s_cmp_ge_u32 s2, 1
    s_cbranch_scc1 L_kd_end
    v_lshlrev_b32 v1, 8, v0
    s_waitcnt lgkmcnt(0)
    s_sub_u32 s8, s8, {back}
    s_subb_u32 s9, s9, 0
    """)
    a.srd(12, 10, OFF_DBG + 4 * 65536)
    a.srd(16, 8, 256)
    sel = [(0, 0, 0, 'min'), (0, 0, 2, 'max'), (0, 0, 3, 'max'), (0, 0, 7, 'max'),
           (1, 0, 0, 'min'), (1, 0, 2, 'max'), (1, 4, 4, 'max'), (1, 0, 3, 'max'), (1, 4, 5, 'max'), (1, 0, 7, 'max'),
           (2, 0, 0, 'min'), (2, 0, 1, 'max'), (2, 0, 2, 'max'), (2, 0, 7, 'max')]
    a("v_mov_b32 v3, 0")
    for n, (k, w, s, op) in enumerate(sel):
        a(f"s_mov_b32 s20, {OFF_DBG + k*65536 + w*32 + s*4}")
        a("buffer_load_dword v2, v1, s[12:15], s20 offen")
        if k == 0:
            a("v_cmp_gt_u32 vcc, 247, v0")
        else:
            a("v_cmp_gt_u32 vcc, 256, v0")
        a("s_waitcnt vmcnt(0)")
        if op == 'min':
            a("v_not_b32 v2, v2")
        a("s_and_saveexec_b64 s[22:23], vcc")
        a(f"buffer_atomic_umax v2, v3, s[16:19], 0 offen offset:{4*n}")
        a("s_mov_b64 exec, s[22:23]")
    a("L_kd_end:")
    a("s_endpgm")
    return a.finish(False)
```

```python
from asmlib import Asm
import os, math
from layout import *
from ka import load_args, X, WSP, BSP, OUT, WS

STX = 131072
NSC = STX + 2048
QS = NSC + 16384
SYNC = 161280
LDS_F = SYNC + 256
OP, GQ, GT, SP = 0, 73728, 147456, 0
RS, PART, GRS = 400, 25600, 208
W_H1, W_H2, W_H4, W_H5, W_AT, W_FB, W_H6, W_G1, W_G2, W_AT2 = (4 * k for k in range(10))

sI, sJ, sWV, sFB0, sNB, sOB0, sNBO = 34, 35, 36, 37, 38, 76, 77
SRD_WS, SRD_W, SRD_Z, SRD_S = 40, 44, 48, 52
VSY, VT0, VT1 = 120, 121, 122
SPIN = 80
ws = f"s[{SRD_WS}:{SRD_WS+3}]"
E = os.environ.get


def arrive(a, word, val=None, rtn=None):
    a("s_mov_b64 exec, 1")
    if val is None:
        a(f"v_mov_b32 v{VT0}, 1")
        val = VT0
    if rtn is None:
        a(f"ds_add_u32 v{VSY}, v{val} offset:{word}")
    else:
        a(f"ds_add_rtn_u32 v{rtn}, v{VSY}, v{val} offset:{word}")
    a("s_mov_b64 exec, -1")


def waitw(a, word, target, sT, mask=None):
    l = a.newlabel("w")
    a(f"s_mov_b32 s{SPIN}, 0x80000")
    a(f"{l}:")
    a(f"ds_read_b32 v{VT1}, v{VSY} offset:{word}")
    a("s_waitcnt lgkmcnt(0)")
    a(f"v_readfirstlane_b32 s{sT}, v{VT1}")
    if mask is not None:
        a(f"s_and_b32 s{sT+1}, s{sT}, {mask}")
        a(f"s_cmp_ge_u32 s{sT+1}, {target}")
    else:
        a(f"s_cmp_ge_u32 s{sT}, {target}")
    a(f"s_cbranch_scc1 {l}_d")
    a("s_sleep 1")
    a(f"s_sub_u32 s{SPIN}, s{SPIN}, 1")
    a(f"s_cbranch_scc0 {l}")
    a(f"{l}_d:")


def publish(a, word, sT, nl, vlane, s_base):
    l = a.newlabel("p")
    arrive(a, word, rtn=VT1)
    a(f"""
    s_waitcnt lgkmcnt(0)
    v_readfirstlane_b32 s{sT}, v{VT1}
    v_lshlrev_b32 v{VT0}, 7, v{vlane}
    v_mov_b32 v{VT1}, 1
    s_cmp_eq_u32 s{sT}, 3
    s_cbranch_scc0 {l}
    s_mov_b32 exec_lo, {hex((1 << nl) - 1)}
    s_mov_b32 exec_hi, 0
    buffer_store_dword v{VT1}, v{VT0}, {ws}, s{s_base} offen sc1
    s_mov_b64 exec, -1
    {l}:
    """)


def gpoll(a, voff, soff):
    l = a.newlabel("g")
    a(f"""
    s_mov_b32 s{SPIN}, 0x40000
    {l}:
    buffer_load_dword v{VT1}, v{voff}, {ws}, s{soff} offen sc1
    s_waitcnt vmcnt(0)
    v_cmp_eq_u32 vcc, 0, v{VT1}
    s_nop 4
    s_cbranch_vccz {l}_d
    s_sleep {E("PSLEEP", "3")}
    s_sub_u32 s{SPIN}, s{SPIN}, 1
    s_cbranch_scc0 {l}
    {l}_d:
    """)


class VMQ:
    def __init__(self, a):
        self.a, self.q = a, []

    def load(self, text, tag):
        self.a(text)
        self.q.append(tag)

    def need(self, tags):
        last = max((i for i, t in enumerate(self.q) if t in tags), default=-1)
        if last >= 0:
            self.a(f"s_waitcnt vmcnt({len(self.q) - 1 - last})")
            self.q = self.q[last + 1:]

    def drained(self):
        self.q = []


def gen():
    a = Asm("kf")
    a.stamp(0)
    a.loginit()
    load_args(a)
    a(f"""
    s_cmp_ge_u32 s2, 256
    s_cbranch_scc1 L_kf_end
    v_lshrrev_b32 v1, 6, v0
    s_and_b32 s{sI}, s2, 7
    s_lshl_b32 s{sI}, s{sI}, 2
    s_bfe_u32 s39, s2, 0x20003
    s_add_u32 s{sI}, s{sI}, s39
    v_readfirstlane_b32 s{sWV}, v1
    s_lshr_b32 s{sJ}, s2, 5
    s_min_u32 s39, s{sJ}, 3
    s_mul_i32 s{sFB0}, s{sJ}, 3
    s_sub_u32 s{sOB0}, s{sFB0}, s39
    s_add_u32 s{sFB0}, s{sFB0}, s39
    s_cmp_lt_u32 s{sJ}, 3
    s_cselect_b32 s{sNB}, 4, 3
    s_sub_u32 s39, s{sJ}, 3
    s_cmp_lt_u32 s39, 4
    s_cselect_b32 s{sNBO}, 3, 2
    v_and_b32 v0, 63, v0
    v_mov_b32 v{VSY}, {SYNC}
    s_cmp_ge_u32 s{sWV}, 4
    s_cbranch_scc1 L_kf_helper
    """)
    attention(a)
    helper(a)
    fallback(a)
    a.label("L_kf_end")
    a("s_endpgm")
    return a.finish()


def Q1(n): return f"v[{6*n}:{6*n+3}]"
def Q2(n): return f"v[{6*n+4}:{6*n+5}]"
KV = [dict(k1=48, k2=52, v=54), dict(k1=62, k2=66, v=68)]
S = [80, 96]
V16, V8, VH, VQ = 76, 77, 78, 79
VO = 112
aQ, aT, aT2, aKV, aC, aPASS, aKV0, aO, aKVE, aKVR = 56, 57, 58, 60, 61, 62, 63, 64, 66, 67


def kvload(buf, k):
    b = KV[buf]
    return [f"buffer_load_dwordx4 v[{b['k1']}:{b['k1']+3}], v{V16}, {ws}, s{aKV} offen",
            f"buffer_load_dwordx2 v[{b['k2']}:{b['k2']+1}], v{V8}, {ws}, s{aKV} offen offset:3072",
            f"buffer_load_dwordx4 v[{b['v']}:{b['v']+3}], v{V16}, {ws}, s{aKV} offen offset:1024",
            f"buffer_load_dwordx4 v[{b['v']+4}:{b['v']+7}], v{V16}, {ws}, s{aKV} offen offset:2048"][k]


def qk(n, buf, s):
    b = KV[buf]
    return [f"v_mfma_f32_32x32x16_bf16 v[{s}:{s+15}], v[{b['k1']}:{b['k1']+3}], {Q1(n)}, 0",
            f"v_mfma_f32_32x32x8_bf16 v[{s}:{s+15}], v[{b['k2']}:{b['k2']+1}], {Q2(n)}, v[{s}:{s+15}]"]


def pv(n, buf, s):
    b = KV[buf]
    return [f"v_mfma_f32_32x32x16_bf16 a[{16*n}:{16*n+15}], v[{b['v']}:{b['v']+3}], v[{s}:{s+3}], a[{16*n}:{16*n+15}]",
            f"v_mfma_f32_32x32x16_bf16 a[{16*n}:{16*n+15}], v[{b['v']+4}:{b['v']+7}], v[{s+4}:{s+7}], a[{16*n}:{16*n+15}]"]


kvnext = [f"s_add_u32 s{aKV}, s{aKV}, {KV_REC}", f"s_cmp_eq_u32 s{aKV}, s{aKVE}", f"s_cselect_b32 s{aKV}, s{aKV0}, s{aKV}"][:3 if E("KVROT") else 1]


def restart(a):
    a(f"s_mov_b32 s{aKV}, s{aKVR}")
    for k in range(4):
        a(kvload(0, k))
    for x in kvnext:
        a(x)
    a(kvload(1, 0))
    a(kvload(1, 1))
    for i in range(8):
        a(f"v_mov_b32 v{KV[1]['v']+i}, 0")
        a(f"v_mov_b32 v{S[1]+i}, 0")
    for n in range(8):
        a(f"v_mfma_f32_32x32x16_bf16 a[{16*n}:{16*n+15}], v[{S[1]}:{S[1]+3}], v[{S[1]}:{S[1]+3}], 0")
    a(f"s_mov_b32 s{aC}, 0")


def attention(a):
    sT, sT2 = aT, aT2
    a(f"""
    v_lshlrev_b32 v{V16}, 4, v0
    v_lshlrev_b32 v{V8}, 3, v0
    s_mul_i32 s{aQ}, s{sI}, 320
    s_mul_i32 s{sT}, s{sJ}, 20
    s_add_u32 s{aQ}, s{aQ}, s{sT}
    s_lshl_b32 s{aQ}, s{aQ}, 8
    s_lshl_b32 s{sT}, s{sWV}, 10
    s_add_u32 s{aQ}, s{aQ}, s{sT}
    s_add_u32 m0, s{sT}, {QS}
    s_cmp_eq_u32 s{sWV}, 0
    s_cselect_b32 s{sT2}, 0, {40960 - 5120}
    s_add_u32 s{sT2}, s{sT2}, s{aQ}
    s_add_u32 s{sT2}, s{sT2}, 4096
    s_mul_i32 s{aKV0}, s{sWV}, {16*KV_REC}
    s_add_u32 s{aKV0}, s{aKV0}, {OFF_KV}
    s_mov_b32 s{aPASS}, 0
    s_add_u32 s{aKVE}, s{aKV0}, {16*KV_REC}
    s_bfe_u32 s{sT}, s2, 0x40003
    s_mul_i32 s{aKVR}, s{sT}, {KV_REC if E('KVROT') else 0}
    s_add_u32 s{aKVR}, s{aKVR}, s{aKV0}
    s_waitcnt lgkmcnt(0)
    """)
    a.log(127)
    a.srd(SRD_WS, WS, WS_END)
    a(f"""
    buffer_load_dwordx4 v{V16}, {ws}, s{aQ} offen lds
    s_add_u32 m0, m0, 4096
    s_add_u32 s{aQ}, s{aQ}, {8192 + 40960 - 5120}
    buffer_load_dwordx4 v{V16}, {ws}, s{sT2} offen lds
    s_cmp_ge_u32 s{sWV}, 2
    s_cbranch_scc1 L_kf_at_start
    s_add_u32 m0, m0, 4096
    s_nop 0
    buffer_load_dwordx4 v{V16}, {ws}, s{aQ} offen lds
    L_kf_at_start:
    """)
    restart(a)
    NT = 2 if E("T1") else 0
    if NT:
        a(f"s_lshl_b32 s{sT}, s{sI}, 18")
        a.srd(SRD_W, WSP, 64 * 4096, add=f"s{sT}")
        a(f"""
        v_lshlrev_b32 v118, 12, v0
        s_lshl_b32 s{sT}, s{sWV}, 10
        buffer_load_dword v119, v118, s[{SRD_W}:{SRD_W+3}], s{sT} offen
        buffer_load_dword v119, v118, s[{SRD_W}:{SRD_W+3}], s{sT} offen offset:128
        """)
    a(f"""
    v_lshrrev_b32 v{VH}, 5, v0
    v_and_b32 v{VQ}, 31, v0
    v_mov_b32 v{VT0}, 0
    v_lshl_add_u32 v{VT1}, v{VQ}, 2, v{VSY}
    ds_write_b32 v{VT1}, v{VT0}
    """)
    for k in range(4):
        a(f"""
        s_add_u32 s{sT}, s{sWV}, {k}
        s_and_b32 s{sT}, s{sT}, 3
        s_mul_i32 s{sT}, s{sT}, 2560
        s_add_u32 s{sT}, s{sT}, {QS}
        v_add_u32 v{S[0]+k}, s{sT}, v{V8}
        """)
    for n in range(8):
        a(f"v_mov_b32 v{6*n+4}, 0")
        a(f"v_mov_b32 v{6*n+5}, 0")
    a.log(127)
    a(f"s_waitcnt vmcnt({NT}) lgkmcnt(0)")
    a.log(127)
    a("s_barrier")
    a.stamp(1)
    for n in range(8):
        a(f"ds_read_b64 v[{6*n}:{6*n+1}], v{S[0]+(n>>1)} offset:{(n&1)*1280}")
        a(f"ds_read_b64 v[{6*n+2}:{6*n+3}], v{S[0]+(n>>1)} offset:{(n&1)*1280+512}")
    a("s_mov_b32 exec_hi, 0")
    for n in range(8):
        a(f"ds_read_b64 v[{6*n+4}:{6*n+5}], v{S[0]+(n>>1)} offset:{(n&1)*1280+1024}")
    a("s_mov_b32 exec_hi, -1")
    a("L_kf_at_go:")
    a("s_waitcnt lgkmcnt(0)")
    for m in qk(0, 0, S[0]):
        a(m)
    a.stamp(2)
    a.rstamp(5)
    a("s_nop 11")
    a(".p2align 3")
    a("L_kf_at_loop:")
    for tl in range(2):
        for n in range(8):
            cur, oth = S[n & 1], S[(n & 1) ^ 1]
            p = pv((n - 1) & 7, tl if n else tl ^ 1, oth)
            q = qk((n + 1) & 7, tl if n < 7 else tl ^ 1, oth)
            e = [f"v_exp_f32 v{cur+i}, v{cur+i}" for i in range(16)]
            c = [f"v_cvt_pk_bf16_f32 v{cur+i}, v{cur+2*i}, v{cur+2*i+1}" for i in range(8)]
            seq = ["s_waitcnt vmcnt(3)"] if n == 1 else []
            seq += [p[0]] + e[0:3] + [p[1]] + e[3:6]
            if n == 7:
                seq.append("s_waitcnt vmcnt(2)")
            seq += [q[0]] + e[6:9] + [q[1]] + e[9:16]
            if n == 7:
                seq += [kvload(tl, 0), kvload(tl, 1)]
            if n == 0:
                seq.append(kvload(tl ^ 1, 2))
            if n == 1:
                seq.append(kvload(tl ^ 1, 3))
                seq += kvnext
            if tl == 1 and n == 6:
                seq.append(f"s_add_u32 s{aC}, s{aC}, 1")
                seq.append(f"s_cmp_lt_u32 s{aC}, 8")
            seq += c
            for x in seq:
                a(x)
    a("s_cbranch_scc1 L_kf_at_loop")
    for m in pv(7, 1, S[1]):
        a(m)
    a.stamp(3)
    a.rstamp(6)
    a.log(127)
    s0 = S[0]
    for k in range(1, 4):
        a(f"""
        s_add_u32 s{sT}, s{sWV}, {k}
        s_and_b32 s{sT}, s{sT}, 3
        s_mul_i32 s{sT}, s{sT}, 18432
        s_add_u32 s{sT}, s{sT}, {OP + (k-1)*6144}
        v_add_u32 v{123+k}, s{sT}, v{V16}
        """)
    a(f"""
    s_mul_i32 s{sT}, s{sWV}, 18432
    v_add_u32 v118, s{sT}, v{V16}
    s_waitcnt vmcnt(0)
    """)
    waitw(a, W_H5, 4, sT)
    a.stamp(4)
    a.log(127)
    for n in range(2, 8):
        for q in range(3):
            a(f"ds_write_b128 v{123+(n>>1)}, a[{16*n+4*q}:{16*n+4*q+3}] offset:{((n&1)*3+q)*1024}")
    for n in range(8):
        a(f"v_accvgpr_read_b32 v{s0+n}, a{16*n+8}")
    a(f"""
    v_max3_f32 v{s0+8}, v{s0}, v{s0+1}, v{s0+2}
    v_min3_f32 v{s0+9}, v{s0}, v{s0+1}, v{s0+2}
    v_max3_f32 v{s0+8}, v{s0+8}, v{s0+3}, v{s0+4}
    v_min3_f32 v{s0+9}, v{s0+9}, v{s0+3}, v{s0+4}
    v_max3_f32 v{s0+8}, v{s0+8}, v{s0+5}, v{s0+6}
    v_min3_f32 v{s0+9}, v{s0+9}, v{s0+5}, v{s0+6}
    v_max_f32 v{s0+8}, v{s0+8}, v{s0+7}
    v_min_f32 v{s0+9}, v{s0+9}, v{s0+7}
    v_cmp_lt_f32 vcc, {f2u(2.0**60):#x}, v{s0+8}
    s_mov_b32 s{sT2}, vcc_hi
    v_cmp_gt_f32 vcc, {f2u(2.0**-60):#x}, v{s0+9}
    s_or_b32 s{sT2}, s{sT2}, vcc_hi
    s_cmp_lg_u32 s{sT2}, 0
    s_cselect_b32 s{sT2}, 0x10001, 1
    s_cmp_lg_u32 s{aPASS}, 0
    s_cselect_b32 s{sT2}, 1, s{sT2}
    v_mov_b32 v{VT0}, s{sT2}
    """)
    arrive(a, W_AT, VT0)
    a.log(127)
    OWN = 84
    for t in range(2):
        for k in range(12):
            a(f"v_accvgpr_read_b32 v{OWN+12*t+k}, a{16*t+k}")
    sW = [68, 69, 70]
    a(f"""
    s_mul_i32 s{sT}, s{sOB0}, 94
    s_mul_i32 s{sT2}, s{sWV}, 10
    s_add_u32 s{sT}, s{sT}, s{sT2}
    s_lshl_b32 s{sT}, s{sT}, 10
    s_add_u32 s{sW[0]}, s{sT}, {OFF_WT}
    s_add_u32 s{sW[1]}, s{sW[0]}, {94*1024}
    s_add_u32 s{sW[2]}, s{sW[0]}, {2*94*1024}
    s_lshl_b32 s65, s{aPASS}, 2
    s_add_u32 s65, s65, 4
    v_mov_b32 v119, v{V16}
    s_waitcnt lgkmcnt(0)
    """)

    def woload(kp, b):
        return f"buffer_load_dwordx4 a[{12*kp+4*b}:{12*kp+4*b+3}], v119, {ws}, s{sW[b]} offen offset:{1024*(kp&3)}"

    def wo_part(lo, hi):
        l = a.newlabel("wo")
        for b in range(3):
            if b == 2:
                a(f"s_cmp_eq_u32 s{sNBO}, 2\ns_cbranch_scc1 {l}")
            for kp in range(lo, hi):
                a(woload(kp, b))
                if kp & 3 == 3:
                    a(f"s_add_u32 s{sW[b]}, s{sW[b]}, 4096")
        a(f"{l}:")

    wo_part(0, 4)
    a(f"""
    s_lshr_b32 s{sT}, s{sWV}, 1
    s_lshl_b32 s{sT2}, s{sI}, 1
    s_add_u32 s{sT}, s{sT}, s{sT2}
    s_mul_i32 s{aO}, s{sT}, 40960
    s_add_u32 s{aO}, s{aO}, {OFF_OF}
    s_and_b32 s{sT}, s{sWV}, 1
    s_mul_i32 s{sT}, s{sT}, 10
    s_mul_i32 s{sT2}, s{sJ}, 20
    s_add_u32 s{sT}, s{sT}, s{sT2}
    v_add_u32 v{108}, s{sT}, v{VH}
    """)
    for t in range(2):
        for q in range(3):
            r = VO + 3*t + q
            g = 108 + 1
            a(f"""
            v_add_u32 v{g}, {5*t + 2*q}, v{108}
            v_lshrrev_b32 v{g+1}, 2, v{g}
            v_lshlrev_b32 v{r}, 10, v{g+1}
            v_and_b32 v{g+1}, 1, v{g}
            v_lshl_add_u32 v{r}, v{g+1}, 9, v{r}
            v_bfe_u32 v{g+1}, v{g}, 1, 1
            v_lshl_add_u32 v{r}, v{g+1}, 3, v{r}
            v_lshl_add_u32 v{r}, v{VQ}, 4, v{r}
            """)
    a.log(127)
    waitw(a, W_AT, "s65", sT, mask="0xffff")
    a(f"""
    s_lshr_b32 s{sT}, s{sT}, 16
    s_cmp_lg_u32 s{sT}, 0
    s_cselect_b32 s{sT}, 1, 0
    s_cmp_lt_u32 s{aPASS}, s{sT}
    s_cbranch_scc1 L_kf_fallback
    """)
    a.stamp(5)
    a.log(127)
    for src in range(3):
        for k in range(6):
            r = (src * 6 + k) * 4
            a(f"ds_read_b128 v[{r}:{r+3}], v118 offset:{src*6144 + k*1024}")
    for src in range(3):
        a(f"s_waitcnt lgkmcnt({12 - 6*src})")
        for k in range(24):
            a(f"v_add_f32 v{OWN+k}, v{OWN+k}, v{24*src+k}")
    a(f"""
    v_mov_b32 v0, v{OWN+8}
    v_mov_b32 v1, v{OWN+8}
    v_mov_b32 v2, v{OWN+20}
    v_mov_b32 v3, v{OWN+20}
    s_nop 0
    v_permlane32_swap_b32 v0, v1
    v_permlane32_swap_b32 v2, v3
    v_rcp_f32 v0, v1
    v_rcp_f32 v2, v3
    """)
    for t in range(2):
        for k in range(12):
            a(f"v_mul_f32 v{OWN+12*t+k}, v{2*t}, v{OWN+12*t+k}")
    for k in range(12):
        a(f"v_cvt_pk_bf16_f32 v{4+k}, v{OWN+2*k}, v{OWN+2*k+1}")
    a.log(127)
    for t in range(2):
        for q in range(2):
            a(f"buffer_store_dwordx2 v[{4+6*t+2*q}:{5+6*t+2*q}], v{VO+3*t+q}, {ws}, s{aO} offen sc1")
    a("s_mov_b32 exec_hi, 0")
    for t in range(2):
        a(f"buffer_store_dwordx2 v[{4+6*t+4}:{5+6*t+4}], v{VO+3*t+2}, {ws}, s{aO} offen sc1")
    a(f"""
    s_mov_b32 exec_hi, -1
    s_lshl_b32 s71, s{sI}, 10
    s_lshl_b32 s{sT}, s{sJ}, 2
    s_add_u32 s72, s71, s{sT}
    s_add_u32 s72, s72, {OFF_FO}
    s_lshl_b32 s{sT}, s{sJ}, 7
    s_add_u32 s71, s71, s{sT}
    s_add_u32 s71, s71, {OFF_FO}
    v_and_b32 v123, 7, v{VQ}
    v_lshlrev_b32 v123, 2, v123
    v_mul_u32_u24 v124, {RS}, v{VQ}
    v_lshl_add_u32 v124, v{VH}, 4, v124
    s_mul_i32 s{sT}, s{sWV}, {PART}
    v_add_u32 v124, s{sT}, v124
    s_waitcnt vmcnt(0)
    """)
    a.log(127)
    publish(a, W_AT2, sT, 8, VQ, 72)
    a.log(127)
    wo_part(4, 10)
    sA0, sA1 = 73, 74
    a(f"""
    s_mul_i32 s{sA0}, s{sI}, {2*40960}
    s_mul_i32 s{sT}, s{sWV}, 10240
    s_add_u32 s{sA0}, s{sA0}, s{sT}
    s_add_u32 s{sA0}, s{sA0}, {OFF_OF}
    s_add_u32 s{sA1}, s{sA0}, 40960
    """)
    a.log(127)
    a(f"s_mul_i32 s{sT}, s{sI}, {2*40960}\ns_add_u32 s{sT}, s{sT}, {OFF_OF}")
    a.srd(SRD_S, WS, 2 * 40960, add=f"s{sT}")
    gpoll(a, 123, 71)
    if E("T4"):
        a(f"""
        s_lshl_b32 s{sT}, s{sWV}, 3
        s_add_u32 s{sT}, s{sT}, s{sJ}
        s_lshl_b32 s{sT}, s{sT}, 13
        v_lshlrev_b32 v123, 3, v119
        s_cmp_ge_u32 s{sWV}, 2
        s_cbranch_scc1 L_kf_not4
        buffer_load_dword v126, v123, s[{SRD_S}:{SRD_S+3}], s{sT} offen sc1
        L_kf_not4:
        """)
    a.stamp(6)
    a.log(127)
    a(f"s_cmp_eq_u32 s{sNBO}, 2\ns_cbranch_scc1 L_kf_s2")
    RING = ["v[96:99]", "v[100:103]", "v[104:107]", "v[108:111]", "v[112:115]", "v[116:119]", "a[120:123]", "a[124:127]"]
    for nb in (3, 2):
        if nb == 2:
            a("L_kf_s2:")
        a("v_mov_b32 v125, v119")
        vq = VMQ(a)

        def oload(kp):
            if kp and kp & 3 == 0:
                a(f"s_add_u32 s{sA0}, s{sA0}, 4096\ns_add_u32 s{sA1}, s{sA1}, 4096")
            for tb in range(2):
                vq.load(f"buffer_load_dwordx4 {RING[2*(kp&3)+tb]}, v125, {ws}, s{sA0+tb} offen offset:{1024*(kp&3)} sc1", kp)
        for kp in range(4):
            oload(kp)
        for kp in range(10):
            vq.need([kp])
            for b in range(nb):
                for tb in range(2):
                    ac = (2 * b + tb) * 16
                    a(f"v_mfma_f32_32x32x16_bf16 v[{ac}:{ac+15}], a[{12*kp+4*b}:{12*kp+4*b+3}], {RING[2*(kp&3)+tb]}, " + (f"v[{ac}:{ac+15}]" if kp else "0"))
            if kp + 4 < 10:
                oload(kp + 4)
        a.log(127)
        waitw(a, W_G2, 4, sT)
        a.log(127)
        for b in range(nb):
            for tb in range(2):
                for q in range(4):
                    ac = (2 * b + tb) * 16 + 4 * q
                    a(f"ds_write_b128 v124, v[{ac}:{ac+3}] offset:{SP + tb*32*RS + b*128 + q*32}")
        a.log(127)
        a("s_waitcnt lgkmcnt(0)\ns_barrier")
        a("s_branch L_kf_f_end")


def fallback(a):
    sT = aT
    a("L_kf_fallback:")
    a(f"s_mov_b32 s{aKV}, s{aKV0}")
    a(f"s_mov_b32 s{aC}, 0")
    a("s_waitcnt vmcnt(0)")
    MX = 54
    for n in range(8):
        a(f"v_mov_b32 v{MX+n}, 0xff800000")
    a("L_kf_fb_loop:")
    a(kvload(0, 0))
    a(kvload(0, 1))
    a(f"s_add_u32 s{aKV}, s{aKV}, {KV_REC}")
    a("s_waitcnt vmcnt(0)")
    for n in range(8):
        for m in qk(n, 0, S[0]):
            a(m)
        for k in range(0, 16, 2):
            a(f"v_max3_f32 v{MX+n}, v{MX+n}, v{S[0]+k}, v{S[0]+k+1}")
    a(f"""
    s_add_u32 s{aC}, s{aC}, 1
    s_cmp_lt_u32 s{aC}, 16
    s_cbranch_scc1 L_kf_fb_loop
    s_lshl_b32 s{aT2}, s{sWV}, 11
    v_lshrrev_b32 v{S[1]}, 2, v{V16}
    """)
    for k in range(4):
        a(f"""
        s_add_u32 s{sT}, s{sWV}, {k}
        s_and_b32 s{sT}, s{sT}, 3
        s_lshl_b32 s{sT}, s{sT}, 9
        v_add_u32 v{S[1]+1+k}, s{sT}, v{S[1]}
        v_add_u32 v{S[1]+5+k}, s{aT2}, v{S[1]+1+k}
        """)
    for n in range(8):
        a(f"v_mov_b32 v{S[0]+n}, v{MX+n}")
    for n in range(8):
        a(f"v_permlane32_swap_b32 v{S[0]+n}, v{MX+n}")
    for n in range(8):
        a(f"v_max_f32 v{MX+n}, v{MX+n}, v{S[0]+n}")
        a(f"ds_write_b32 v{S[1]+5+(n>>1)}, v{MX+n} offset:{OP + 256*(n&1)}")
    arrive(a, W_FB)
    waitw(a, W_FB, 4, sT)
    for n in range(8):
        for src in range(4):
            a(f"ds_read_b32 v{S[0]+src}, v{S[1]+1+(n>>1)} offset:{OP + 2048*src + 256*(n&1)}")
        t = S[0]
        a(f"""
        s_waitcnt lgkmcnt(0)
        v_max3_f32 v{t}, v{t}, v{t+1}, v{t+2}
        v_max_f32 v{t}, v{t}, v{t+3}
        v_sub_f32 v{t}, 0, v{t}
        v_and_b32 v{t+1}, 0xffff0000, v{t}
        v_sub_f32 v{t}, v{t}, v{t+1}
        v_and_b32 v{t+2}, 0xffff0000, v{t}
        v_sub_f32 v{t}, v{t}, v{t+2}
        v_lshrrev_b32 v{t+1}, 16, v{t+1}
        s_mov_b32 exec_lo, 0
        v_or_b32 v{6*n+4}, v{t+1}, v{t+2}
        v_lshrrev_b32 v{6*n+5}, 16, v{t}
        s_mov_b32 exec_lo, -1
        """)
    arrive(a, W_FB)
    waitw(a, W_FB, 8, sT)
    a(f"s_mov_b32 s{aPASS}, 1")
    restart(a)
    a("s_waitcnt vmcnt(0)")
    a("s_branch L_kf_at_go")


def helper(a):
    sHW, sT, sT2, sZo, sWo, sC, sX, sHR, sU = 56, 57, 58, 60, 61, 62, 64, 65, 66
    VD = [80 + i for i in range(8)]
    WA = [88, 89, 90, 91]
    H16, HH, HL = 92, 93, 94
    Z1 = 96
    BI = 112
    a("L_kf_helper:")
    a(f"""
    s_setprio {E("HPRIO0", "3")}
    s_sub_u32 s{sHW}, s{sWV}, 4
    v_lshlrev_b32 v{H16}, 4, v0
    v_lshrrev_b32 v{HH}, 5, v0
    v_and_b32 v{HL}, 31, v0
    v_lshlrev_b32 v1, 3, v0
    s_mul_i32 s{sT}, s{sHW}, {7*16384}
    s_lshl_b32 s{sT2}, s{sI}, 9
    s_add_u32 s{sT}, s{sT}, s{sT2}
    s_add_u32 s{sU}, s{sFB0}, s{sHW}
    s_mul_i32 s{sT2}, s{sI}, 54
    s_add_u32 s{sT2}, s{sT2}, s{sU}
    s_lshl_b32 s{sX}, s{sT2}, 11
    s_add_u32 s{sT2}, s{sX}, {OFF_ZR}
    s_lshl_b32 s{sHR}, s{sHW}, 15
    v_lshlrev_b32 v2, 1, v{HL}
    s_lshl_b32 s74, s{sI}, 7
    s_waitcnt lgkmcnt(0)
    """)
    a.log(127)
    a.srd(SRD_S, WS, 27 * 16384, add=OFF_ST)
    a.srd(SRD_WS, WS, WS_END)
    a.srd(SRD_Z, BSP, 4096)
    a(f"""
    buffer_load_ushort v{BI}, v2, s[{SRD_Z}:{SRD_Z+3}], s74 offen
    buffer_load_ushort v{BI+1}, v2, s[{SRD_Z}:{SRD_Z+3}], s74 offen offset:64
    """)
    for k in range(7):
        a(f"buffer_load_dwordx2 v[{32+2*k}:{33+2*k}], v1, s[{SRD_S}:{SRD_S+3}], s{sT} offen")
        if k < 6:
            a(f"s_add_u32 s{sT}, s{sT}, 16384")
    for sb in range(2):
        a(f"buffer_load_dwordx4 v[{16+8*sb}:{19+8*sb}], v{H16}, {ws}, s{sT2} offen")
        a(f"buffer_load_dwordx4 v[{20+8*sb}:{23+8*sb}], v{H16}, {ws}, s{sT2} offen offset:1024")
        if sb == 0:
            a(f"s_add_u32 s{sT2}, s{sT2}, {27*2048}")
    a.srd(SRD_Z, WS, 128 * 27 * 1024, add=OFF_ZN)
    a(f"""
    s_lshl_b32 s{sWo}, s{sHW}, 10
    s_lshl_b32 s{sT}, s{sHW}, 9
    s_add_u32 s{sT}, s{sT}, {STX}
    v_add_u32 v5, s{sT}, v1
    v_add_u32 v6, {STX}, v1
    s_lshl_b32 s{sT}, s{sHW}, 12
    s_add_u32 s{sT}, s{sT}, {NSC}
    v_lshlrev_b32 v7, 6, v{HL}
    v_lshl_add_u32 v7, v{HH}, 3, v7
    v_add_u32 v7, s{sT}, v7
    v_bfe_u32 v8, v0, 2, 2
    v_lshl_add_u32 v8, v{HH}, 3, v8
    v_lshlrev_b32 v8, 6, v8
    v_bfe_u32 v9, v0, 4, 1
    v_lshl_add_u32 v8, v9, 5, v8
    v_and_b32 v9, 3, v0
    v_lshl_add_u32 v8, v9, 3, v8
    v_add_u32 v8, s{sT}, v8
    """)
    for r in range(4):
        a(f"v_mov_b32 v{12+r}, 0")
    for n in range(8):
        a(f"v_mfma_f32_32x32x16_bf16 a[{16*n}:{16*n+15}], v[12:15], v[12:15], 0")
    a.log(127)
    a("s_waitcnt vmcnt(4)")
    a.log(127)
    for k in range(1, 7):
        a(f"v_add_f32 v32, v32, v{32+2*k}")
        a(f"v_add_f32 v33, v33, v{33+2*k}")
    a(f"""
    v_lshlrev_b32 v{BI}, 16, v{BI}
    v_lshlrev_b32 v{BI+1}, 16, v{BI+1}
    ds_write_b64 v5, v[32:33]
    s_waitcnt lgkmcnt(0)
    s_barrier
    """)
    a.stamp(1)
    for k in range(4):
        a(f"ds_read_b64 v[{32+2*k}:{33+2*k}], v6 offset:{512*k}")
    a(f"""
    s_mov_b32 s{sT}, {f2u(1/864):#x}
    s_waitcnt lgkmcnt(0)
    v_add_f32 v32, v32, v34
    v_add_f32 v33, v33, v35
    v_add_f32 v36, v36, v38
    v_add_f32 v37, v37, v39
    v_add_f32 v32, v32, v36
    v_add_f32 v33, v33, v37
    v_mul_f32 v32, s{sT}, v32
    v_mul_f32 v33, s{sT}, v33
    v_fma_f32 v33, -v32, v32, v33
    v_max_f32 v33, 0, v33
    v_add_f32 v33, {f2u(1e-5):#x}, v33
    v_rsq_f32 v34, v33
    s_cmp_ge_u32 s{sHW}, s{sNB}
    v_mul_f32 v35, -v32, v34
    v_mov_b32 v36, v34
    v_mov_b32 v37, v35
    s_cbranch_scc1 L_kf_h_nonorm
    v_permlane32_swap_b32 v34, v36
    v_permlane32_swap_b32 v35, v37
    s_mov_b32 s75, 0xffff0000
    s_waitcnt vmcnt(0)
    """)
    for sb in range(2):
        ab = 34 + 2 * sb
        for k in range(8):
            a(f"v_lshlrev_b32 v{48+2*k}, 16, v{16+8*sb+k}")
            a(f"v_and_b32 v{49+2*k}, s75, v{16+8*sb+k}")
        for k in range(16):
            a(f"v_fma_f32 v{48+k}, v{48+k}, v{ab}, v{ab+1}")
        for k in range(8):
            a(f"v_cvt_pk_bf16_f32 v{16+8*sb+k}, v{48+2*k}, v{49+2*k}")
        for q in range(4):
            a(f"ds_write_b64 v7, v[{16+8*sb+2*q}:{17+8*sb+2*q}] offset:{2048*sb+16*q}")
    a(f"""
    s_mul_i32 s{sT}, s{sI}, {4*27}
    s_add_u32 s{sT}, s{sT}, s{sU}
    s_lshl_b32 s{sT}, s{sT}, 10
    s_waitcnt lgkmcnt(0)
    """)
    for kl in range(4):
        a(f"ds_read_b64_tr_b16 v[{48+4*kl}:{49+4*kl}], v8 offset:{1024*kl}")
        a(f"ds_read_b64_tr_b16 v[{50+4*kl}:{51+4*kl}], v8 offset:{1024*kl+256}")
    for kl in range(4):
        a(f"s_waitcnt lgkmcnt({6-2*kl})")
        a(f"buffer_store_dwordx4 v[{48+4*kl}:{51+4*kl}], v{H16}, s[{SRD_Z}:{SRD_Z+3}], s{sT} offen sc1")
        if kl < 3:
            a(f"s_add_u32 s{sT}, s{sT}, {27*1024}")
    a("L_kf_h_nonorm:")
    a.stamp(2)

    LA = int(E("LA", "2"))
    WSCH = {1: [2, 2, 2, 2], 2: [3, 3, 2, 0], 3: [4, 4, 0, 0]}[LA]
    sZ0, sZE, sW0, sWE, sMW, sHZ = 68, 69, 70, 71, 72, 73
    FW = [0, 8]
    FZ = [16, 32]
    ZA = 48

    def wdma(i):
        return f"buffer_load_dwordx4 v{VD[i]}, s[{SRD_W}:{SRD_W+3}], s{sWo} offen offset:{1024*(i&3)} lds"

    def wpieces(lo, hi):
        out = []
        for i in range(lo, hi):
            if i == lo or i == 4:
                out.append(f"s_add_u32 m0, s{sMW}, {4096*(i>>2)}")
            out.append(wdma(i))
        if hi == 8:
            out += [f"s_add_u32 s{sWo}, s{sWo}, 128", f"s_cmp_eq_u32 s{sWo}, s{sWE}", f"s_cselect_b32 s{sWo}, s{sW0}, s{sWo}",
                    f"s_xor_b32 s{sMW}, s{sMW}, 8192"]
        return out

    def zdma(slot, nb):
        out = [f"s_add_u32 m0, s{sHZ}, {4096*slot}"]
        out += [f"buffer_load_dwordx4 v{H16}, s[{SRD_Z}:{SRD_Z+3}], s{sZo} offen offset:{1024*b} sc1 lds" for b in range(nb)]
        out += [f"s_add_u32 s{sZo}, s{sZo}, {27*1024}", f"s_cmp_eq_u32 s{sZo}, s{sZE}", f"s_cselect_b32 s{sZo}, s{sZ0}, s{sZo}"]
        return out

    a(f"""
    v_lshrrev_b32 v2, 3, v0
    v_and_b32 v3, 7, v0
    v_lshrrev_b32 v4, 4, v0
    v_xor_b32 v4, v4, v3
    v_lshlrev_b32 v4, 4, v4
    v_lshl_add_u32 v{VD[0]}, v2, 12, v4
    v_xor_b32 v4, 64, v{VD[0]}
    v_add_u32 v{VD[1]}, {32768-1024}, v4
    v_add_u32 v{VD[2]}, {2*(32768-1024)}, v{VD[0]}
    v_add_u32 v{VD[3]}, {3*(32768-1024)}, v4
    v_add_u32 v{VD[4]}, {4*32768}, v{VD[0]}
    v_add_u32 v{VD[5]}, {4*32768}, v{VD[1]}
    v_add_u32 v{VD[6]}, {4*32768}, v{VD[2]}
    v_add_u32 v{VD[7]}, {4*32768}, v{VD[3]}
    v_bfe_u32 v4, v0, 1, 3
    v_xor_b32 v4, v4, v{HH}
    v_lshlrev_b32 v4, 4, v4
    v_lshl_add_u32 v4, v{HL}, 7, v4
    v_add_u32 v{WA[0]}, s{sHR}, v4
    v_xor_b32 v{WA[1]}, 32, v{WA[0]}
    v_xor_b32 v{WA[2]}, 64, v{WA[0]}
    v_xor_b32 v{WA[3]}, 96, v{WA[0]}
    s_lshl_b32 s{sT}, s{sI}, 18
    """)
    a.srd(SRD_W, WSP, 64 * 4096, add=f"s{sT}")
    a(f"""
    s_lshl_b32 s74, s{sJ}, 12
    s_lshl_b32 s{sT}, s{sI}, 2
    s_add_u32 s75, s74, s{sT}
    s_add_u32 s75, s75, {OFF_FZ}
    s_lshl_b32 s{sT}, s{sI}, 7
    s_add_u32 s78, s74, s{sT}
    s_add_u32 s78, s78, {OFF_FZ}
    s_waitcnt vmcnt(0)
    """)
    a.stamp(3)
    publish(a, W_H2, sT, 32, HL, 75)
    rot = 1 if E("HROT") else 0
    a(f"""
    s_mov_b32 s{sC}, 0
    s_and_b32 s74, s{sI}, 3
    s_lshl_b32 s74, s74, 1
    s_add_u32 s74, s74, s{sJ}
    s_and_b32 s74, s74, {7 * rot}
    s_mov_b32 s{sW0}, s{sWo}
    s_add_u32 s{sWE}, s{sWo}, 1024
    s_lshl_b32 s75, s74, 7
    s_add_u32 s{sWo}, s{sWo}, s75
    s_mov_b32 s{sMW}, s{sHR}
    s_add_u32 s{sHZ}, s{sHR}, 16384
    """)
    for x in wpieces(0, 8):
        a(x)
    a(f"""
    s_mul_i32 s{sZ0}, s{sHW}, {32*27}
    s_add_u32 s{sZ0}, s{sZ0}, s{sFB0}
    s_lshl_b32 s{sZ0}, s{sZ0}, 10
    s_add_u32 s{sZE}, s{sZ0}, {32*27*1024}
    s_mul_i32 s75, s74, {4*27*1024}
    s_add_u32 s{sZo}, s{sZ0}, s75
    v_add_u32 v{ZA}, s{sHZ}, v{H16}
    v_lshlrev_b32 v49, 2, v{HL}
    """)
    gpoll(a, 49, 78)
    a(f"s_setprio {E('HPRIO', '0')}")
    a.stamp(4)
    a(f"""
    s_cmp_eq_u32 s{sNB}, 3
    s_cbranch_scc1 L_kf_h_main3
    """)

    def freads(buf, kp, nb):
        r = [f"ds_read_b128 v[{FW[buf]}:{FW[buf]+3}], v{WA[kp]}",
             f"ds_read_b128 v[{FZ[buf]}:{FZ[buf]+3}], v{ZA} offset:{4096*kp}",
             f"ds_read_b128 v[{FW[buf]+4}:{FW[buf]+7}], v{WA[kp]} offset:4096"]
        r += [f"ds_read_b128 v[{FZ[buf]+4*b}:{FZ[buf]+4*b+3}], v{ZA} offset:{4096*kp+1024*b}" for b in range(1, nb)]
        return r

    def main(nb):
        a(f"L_kf_h_main{nb}:")
        for k in range(LA + 1):
            for x in zdma(k, nb):
                a(x)
        for x in wpieces(0, WSCH[0]):
            a(x)
        a(f"s_waitcnt vmcnt({LA*nb + WSCH[0]})")
        for r in freads(0, 0, nb):
            a(r)
        a(f"v_xor_b32 v{WA[0]}, 8192, v{WA[0]}")
        wn = lambda kp: WSCH[(kp + 1) & 3]
        a(f"L_kf_h_loop{nb}:")
        for kp in range(4):
            buf = kp & 1
            allowed = sum(nb + wn((kp - d) & 3) for d in range(1, LA))
            pre = []
            if kp == 3:
                pre += [f"s_add_u32 s{sC}, s{sC}, 1", f"s_cmp_ge_u32 s{sC}, 7", f"s_cselect_b32 s{SRD_W+2}, 0, s{SRD_W+2}"]
            if kp == (31 - LA) & 3:
                pre += [f"s_cmp_ge_u32 s{sC}, {((31 - LA) >> 2) + (1 if kp == 3 else 0)}", f"s_cselect_b32 s{SRD_Z+2}, 0, s{SRD_Z+2}"]
            for x in pre:
                a(x)
            a(f"s_waitcnt vmcnt({allowed}) lgkmcnt(0)")
            lo = sum(WSCH[:(kp + 1) & 3])
            rd = freads(buf ^ 1, (kp + 1) & 3, nb)
            fill = rd + zdma((kp + LA + 1) & 3, nb) + (wpieces(lo, lo + wn(kp)) if wn(kp) else [])
            fill.insert(len(rd), f"v_xor_b32 v{WA[(kp + 1) & 3]}, 8192, v{WA[(kp + 1) & 3]}")
            nm = 2 * nb
            k = 0
            for m in range(nm):
                b, tb = m >> 1, m & 1
                ac = m * 16
                a(f"v_mfma_f32_32x32x16_bf16 a[{ac}:{ac+15}], v[{FZ[buf]+4*b}:{FZ[buf]+4*b+3}], v[{FW[buf]+4*tb}:{FW[buf]+4*tb+3}], a[{ac}:{ac+15}]")
                e = (len(fill) * (m + 1) + nm - 1) // nm
                for x in fill[k:e]:
                    a(x)
                k = e
        a(f"""
        s_cmp_lt_u32 s{sC}, 8
        s_cbranch_scc1 L_kf_h_loop{nb}
        """)

    main(4)
    a("s_branch L_kf_h_epi")
    main(3)
    a("L_kf_h_epi:")
    a.stamp(5)
    a.log(127)
    a(f"""
    s_setprio {E("HPRIO2", "2")}
    s_add_u32 s{sT2}, s{sX}, {OFF_Z1}
    s_waitcnt vmcnt(0) lgkmcnt(0)
    v_add_u32 v2, s{sHR}, v{H16}
    """)
    a.srd(SRD_W, WS, 20 * 94 * 1024, add=OFF_WT)
    if E("T2"):
        a(f"""
        s_and_b32 s{sT}, s{sI}, 3
        s_lshl_b32 s{sT}, s{sT}, 2
        s_add_u32 s{sT}, s{sT}, s{sHW}
        s_lshl_b32 s{sT}, s{sT}, 13
        s_mul_i32 s74, s{sOB0}, {94*1024}
        s_add_u32 s{sT}, s{sT}, s74
        v_lshlrev_b32 v3, 3, v{H16}
        buffer_load_dword v114, v3, s[{SRD_W}:{SRD_W+3}], s{sT} offen
        s_add_u32 s{sT}, s{sT}, {16*8192}
        buffer_load_dword v114, v3, s[{SRD_W}:{SRD_W+3}], s{sT} offen
        s_add_u32 s{sT}, s{sT}, {16*8192}
        s_cmp_eq_u32 s{sNBO}, 2
        s_cbranch_scc1 L_kf_h_not2
        buffer_load_dword v114, v3, s[{SRD_W}:{SRD_W+3}], s{sT} offen
        L_kf_h_not2:
        """)
    for tb in range(2):
        a(f"buffer_load_dwordx4 v[{Z1+8*tb}:{Z1+8*tb+3}], v{H16}, {ws}, s{sT2} offen")
        a(f"buffer_load_dwordx4 v[{Z1+8*tb+4}:{Z1+8*tb+7}], v{H16}, {ws}, s{sT2} offen offset:1024")
        if tb == 0:
            a(f"s_add_u32 s{sT2}, s{sT2}, {27*2048}")
    for k in range(32):
        if k == 24:
            a(f"s_cmp_eq_u32 s{sNB}, 3\ns_cbranch_scc1 L_kf_h_w3")
        a(f"ds_write_b128 v2, a[{4*k}:{4*k+3}] offset:{1024*k}")
    a("L_kf_h_w3:")
    arrive(a, W_H4)
    a(f"""
    s_lshl_b32 s{sT}, s{sHW}, 13
    v_add_u32 v0, s{sT}, v{H16}
    v_add_u32 v1, 65536, v0
    s_mul_i32 s{sT2}, s{sI}, {2*54}
    s_lshl_b32 s{sU}, s{sU}, 1
    s_add_u32 s{sU}, s{sU}, s{sT2}
    s_lshl_b32 s{sU}, s{sU}, 10
    s_add_u32 s{sU}, s{sU}, {OFF_U}
    s_mov_b32 s75, 0xffff0000
    """)
    a.log(127)
    waitw(a, W_H4, 4, sT)
    a.log(127)
    a(f"""
    s_cmp_ge_u32 s{sHW}, s{sNB}
    s_cbranch_scc1 L_kf_h_done
    """)
    for tb in range(2):
        for src in range(4):
            for q in range(4):
                r = 16 + src * 16 + 4 * q
                a(f"ds_read_b128 v[{r}:{r+3}], v{src >> 1} offset:{(src & 1)*32768 + tb*4096 + q*1024}")
        for src in range(1, 4):
            a(f"s_waitcnt lgkmcnt({12 - 4*src})")
            if tb == 1 and src == 3:
                arrive(a, W_H5)
            for k in range(16):
                a(f"v_add_f32 v{16+k}, v{16+k}, v{16+16*src+k}")
        for k in range(16):
            a(f"v_add_f32 v{16+k}, v{16+k}, v{BI+tb}")
        if tb == 0:
            a("s_waitcnt vmcnt(0)")
        for k in range(8):
            a(f"v_lshlrev_b32 v{32+2*k}, 16, v{Z1+8*tb+k}")
            a(f"v_and_b32 v{33+2*k}, s75, v{Z1+8*tb+k}")
        for k in range(16):
            a(f"v_mul_f32 v{16+k}, v{16+k}, v{32+k}")
        for k in range(8):
            a(f"v_cvt_pk_bf16_f32 v{4+k}, v{16+2*k}, v{17+2*k}")
        a(f"buffer_store_dwordx4 v[4:7], v{H16}, {ws}, s{sU} offen sc1")
        a(f"buffer_store_dwordx4 v[8:11], v{H16}, {ws}, s{sU} offen offset:1024 sc1")
        if tb == 0:
            a(f"s_add_u32 s{sU}, s{sU}, {54*1024}")
    a("s_branch L_kf_h_pub")
    a("L_kf_h_done:")
    arrive(a, W_H5)
    a("L_kf_h_pub:")
    a.log(127)
    sA, sW = 68, [69, 70, 71]
    WL = 95
    a(f"""
    s_lshl_b32 s72, s{sI}, 10
    s_lshl_b32 s{sT}, s{sJ}, 2
    s_add_u32 s73, s72, s{sT}
    s_add_u32 s73, s73, {OFF_FU}
    s_lshl_b32 s{sT}, s{sJ}, 7
    s_add_u32 s72, s72, s{sT}
    s_add_u32 s72, s72, {OFF_FU}
    s_lshl_b32 s{sT}, s{sHW}, 3
    v_add_u32 v80, s{sT}, v{HL}
    v_and_b32 v80, 31, v80
    v_lshl_add_u32 v80, v{HH}, 5, v80
    v_lshlrev_b32 v{WL}, 4, v80
    v_and_b32 v81, 7, v{HL}
    v_lshlrev_b32 v81, 2, v81
    s_mul_i32 s{sA}, s{sHW}, {14*1024}
    s_mul_i32 s{sT}, s{sOB0}, {94*1024}
    s_add_u32 s{sW[0]}, s{sT}, s{sA}
    s_add_u32 s{sW[0]}, s{sW[0]}, {40*1024}
    s_add_u32 s{sW[1]}, s{sW[0]}, {94*1024}
    s_add_u32 s{sW[2]}, s{sW[0]}, {2*94*1024}
    s_mul_i32 s{sT}, s{sI}, {2*54*1024}
    s_add_u32 s{sT}, s{sT}, {OFF_U}
    s_add_u32 s{sT2}, s{sT}, {54*1024}
    """)
    a.srd(SRD_Z, WS, 54 * 1024, add=f"s{sT}")
    a.srd(SRD_S, WS, 54 * 1024, add=f"s{sT2}")
    for k in range(1, 4):
        a(f"""
        s_add_u32 s{sT}, s{sHW}, {k}
        s_and_b32 s{sT}, s{sT}, 3
        s_mul_i32 s{sT}, s{sT}, 18432
        s_add_u32 s{sT}, s{sT}, {GQ + (k-1)*6144}
        v_add_u32 v{81+k}, s{sT}, v{H16}
        """)
    a(f"""
    s_mul_i32 s{sT}, s{sHW}, 18432
    s_add_u32 s{sT}, s{sT}, {GQ}
    v_add_u32 v85, s{sT}, v{H16}
    v_mul_u32_u24 v86, {GRS}, v{HL}
    v_lshl_add_u32 v86, v{HH}, 3, v86
    s_lshl_b32 s{sT}, s{sHW}, 4
    s_add_u32 s{sT}, s{sT}, {GT}
    v_add_u32 v86, s{sT}, v86
    s_waitcnt vmcnt(0)
    """)
    a.log(127)
    publish(a, W_H6, sT, 8, HL, 73)
    a.stamp(6)
    a(f"s_cmp_eq_u32 s{sNBO}, 2\ns_cbranch_scc1 L_kf_g2")
    for nb in (3, 2):
        if nb == 2:
            a("L_kf_g2:")
        vq = VMQ(a)

        def wl(kp):
            if kp and kp & 3 == 0:
                for b in range(nb):
                    a(f"s_add_u32 s{sW[b]}, s{sW[b]}, 4096")
            r = 20 * (kp & 3)
            for b in range(nb):
                vq.load(f"buffer_load_dwordx4 v[{r+8+4*b}:{r+11+4*b}], v{WL}, s[{SRD_W}:{SRD_W+3}], s{sW[b]} offen offset:{1024*(kp&3)}", kp)

        def ul(kp):
            if kp and kp & 3 == 0:
                a(f"s_add_u32 s{sA}, s{sA}, 4096")
            r = 20 * (kp & 3)
            for tb, srd in enumerate((SRD_Z, SRD_S)):
                vq.load(f"buffer_load_dwordx4 v[{r+4*tb}:{r+4*tb+3}], v{H16}, s[{srd}:{srd+3}], s{sA} offen offset:{1024*(kp&3)} sc1", kp)
        for kp in range(4):
            wl(kp)
        a.log(127)
        gpoll(a, 81, 72)
        a.log(127)
        vq.drained()
        if E("T3"):
            l = a.newlabel("t3")
            a(f"""
            s_lshl_b32 s{sT}, s{sJ}, 13
            v_lshlrev_b32 v80, 3, v{H16}
            s_cmp_ge_u32 s{sHW}, 2
            s_cbranch_scc1 {l}
            s_cmp_eq_u32 s{sHW}, 1
            s_cbranch_scc1 {l}_1
            buffer_load_dword v87, v80, s[{SRD_Z}:{SRD_Z+3}], s{sT} offen sc1
            s_branch {l}
            {l}_1:
            buffer_load_dword v87, v80, s[{SRD_S}:{SRD_S+3}], s{sT} offen sc1
            {l}:
            """)
        for kp in range(4):
            ul(kp)
        for kp in range(14):
            vq.need([kp])
            r = 20 * (kp & 3)
            for b in range(nb):
                for tb in range(2):
                    ac = (2 * b + tb) * 16
                    a(f"v_mfma_f32_32x32x16_bf16 a[{ac}:{ac+15}], v[{r+8+4*b}:{r+11+4*b}], v[{r+4*tb}:{r+4*tb+3}], " + (f"a[{ac}:{ac+15}]" if kp else "0"))
            if kp + 4 < 14:
                ul(kp + 4)
                wl(kp + 4)
        a.log(127)
        waitw(a, W_H5, 4, sT)
        for k in range(1, 4):
            for m in range(2 * nb):
                a(f"ds_write_b128 v{81+k}, a[{16*m+4*k}:{16*m+4*k+3}] offset:{1024*m}")
        arrive(a, W_G1)
        G = 96
        for m in range(2 * nb):
            for r in range(4):
                a(f"v_accvgpr_read_b32 v{G+4*m+r}, a{16*m+r}")
        a.log(127)
        waitw(a, W_G1, 4, sT)
        a.log(127)
        for k in range(3):
            for m in range(2 * nb):
                r = (k * 6 + m) * 4
                a(f"ds_read_b128 v[{r}:{r+3}], v85 offset:{k*6144 + 1024*m}")
        for k in range(3):
            a(f"s_waitcnt lgkmcnt({(2-k)*2*nb})")
            if k == 2:
                arrive(a, W_G2)
            for r in range(8 * nb):
                a(f"v_add_f32 v{G+r}, v{G+r}, v{24*k+r}")
        for r in range(8 * nb):
            a(f"v_mul_f32 v{r}, {f2u(-math.log2(math.e)):#x}, v{G+r}")
        for r in range(8 * nb):
            a(f"v_exp_f32 v{r}, v{r}")
        for r in range(8 * nb):
            a(f"v_add_f32 v{r}, 1.0, v{r}")
        for r in range(8 * nb):
            a(f"v_rcp_f32 v{r}, v{r}")
        for r in range(8 * nb):
            a(f"v_mul_f32 v{r}, v{r}, v{G+r}")
        for r in range(4 * nb):
            a(f"v_cvt_pk_bf16_f32 v{32+r}, v{2*r}, v{2*r+1}")
        for m in range(2 * nb):
            b, tb = m >> 1, m & 1
            a(f"ds_write_b64 v86, v[{32+2*m}:{33+2*m}] offset:{tb*32*GRS + 64*b}")
        final(a, nb, H16, sHW)


def final(a, nb, H16, sHW):
    sT, sT2 = 57, 58
    SRD_X, SRD_O = SRD_W, SRD_Z
    a(f"""
    v_lshrrev_b32 v96, 4, v{H16}
    s_lshl_b32 s{sT}, s{sHW}, 6
    v_add_u32 v96, s{sT}, v96
    s_mul_i32 s{sT}, s{sI}, {64*1280}
    s_lshl_b32 s{sT2}, s{sOB0}, 6
    s_add_u32 s{sT}, s{sT}, s{sT2}
    """)
    a.srd(SRD_X, X, 2048 * 1280)
    a.srd(SRD_O, OUT, 2048 * 1280)
    for k in range(nb):
        if k:
            a("v_add_u32 v96, 256, v96")
        if nb == 2:
            a("v_lshrrev_b32 v97, 3, v96\nv_and_b32 v98, 7, v96")
        else:
            a("v_mul_u32_u24 v97, 43691, v96\nv_lshrrev_b32 v97, 19, v97\nv_mul_u32_u24 v98, 12, v97\nv_sub_u32 v98, v96, v98")
        a(f"""
        v_mul_u32_u24 v99, 1280, v97
        v_lshl_add_u32 v{100+k}, v98, 4, v99
        v_mul_u32_u24 v99, {RS}, v97
        v_lshl_add_u32 v{103+k}, v98, 5, v99
        v_add_u32 v{123+k}, {2*PART}, v{103+k}
        v_mul_u32_u24 v99, {GRS}, v97
        v_lshl_add_u32 v99, v98, 4, v99
        v_add_u32 v{116+k}, {GT}, v99
        """)
        x = [44, 48, 52][k]
        a(f"buffer_load_dwordx4 v[{x}:{x+3}], v{100+k}, s[{SRD_X}:{SRD_X+3}], s{sT} offen")
    a("s_waitcnt vmcnt(0)")
    XU = [56, 64, 72]
    for k in range(nb):
        for p in range(4):
            a(f"v_lshlrev_b32 v{XU[k]+2*p}, 16, v{44+4*k+p}")
            a(f"v_and_b32 v{XU[k]+2*p+1}, s75, v{44+4*k+p}")
    a.log(127)
    a("s_waitcnt lgkmcnt(0)\ns_barrier")
    a.log(127)

    def reads(k):
        o = 0 if k != 1 else 80
        R = list(range(0, 36)) if k != 1 else list(range(80, 96)) + list(range(36, 56))
        for w in range(4):
            base = 103 + k if w < 2 else 123 + k
            for hf in range(2):
                r = R[8 * w + 4 * hf]
                a(f"ds_read_b128 v[{r}:{r+3}], v{base} offset:{SP + (w&1)*PART + 16*hf}")
        a(f"ds_read_b128 v[{R[32]}:{R[32]+3}], v{116+k}")
        return R

    def comp(k, R):
        pk = lambda op, d, x, y, z=None: a(f"v_pk_{op}_f32 v[{d}:{d+1}], v[{x}:{x+1}], v[{y}:{y+1}]" + (f", v[{z}:{z+1}]" if z is not None else ""))
        for p in range(0, 8, 2):
            pk("add", R[p], R[p], R[8 + p])
        for p in range(0, 8, 2):
            pk("add", R[16 + p], R[16 + p], R[24 + p])
        for p in range(4):
            a(f"v_lshlrev_b32 v{R[8+2*p]}, 16, v{R[32+p]}")
            a(f"v_and_b32 v{R[9+2*p]}, s75, v{R[32+p]}")
        for p in range(0, 8, 2):
            pk("add", R[p], R[p], R[16 + p])
        for p in range(0, 8, 2):
            pk("fma", R[p], R[p], R[8 + p], XU[k] + p)
        o = 106 if k != 1 else 110
        for p in range(4):
            a(f"v_cvt_pk_bf16_f32 v{o+p}, v{R[2*p]}, v{R[2*p+1]}")
        a(f"buffer_store_dwordx4 v[{o}:{o+3}], v{100+k}, s[{SRD_O}:{SRD_O+3}], s{sT} offen")

    R0 = reads(0)
    a("s_waitcnt lgkmcnt(3)")
    R1 = reads(1)
    a("s_waitcnt lgkmcnt(9)")
    comp(0, R0)
    if nb == 3:
        a("s_waitcnt lgkmcnt(0)")
        R2 = reads(2)
        comp(1, R1)
        a("s_waitcnt lgkmcnt(0)")
        comp(2, R2)
        a("s_branch L_kf_f_end")
    else:
        a("s_waitcnt lgkmcnt(0)")
        comp(1, R1)
        a("L_kf_f_end:")
        a.log(127)
        a.endpgm(1, sWV, logreg=127)


if __name__ == "__main__":
    for e in range(512):
        assert (e * 0x10000) >> 19 == e // 8
    l = gen()
    print(len(l), "lines")
```

```python
OFF_QG = 0
OFF_KV = 0x280000
KV_REC = 3584
OFF_ST = 0x2B8000
OFF_CNT = 0x324000
OFF_FLG = 0x325000
OFF_Z1 = 0x330000
OFF_ZR = OFF_Z1 + 0x360000
OFF_ZN = OFF_ZR + 0x360000
OFF_U = OFF_ZN + 0x360000
OFF_OF = OFF_U + 0x360000
OFF_WT = OFF_OF + 0x280000
OFF_FZ = OFF_WT + 20 * 94 * 1024
OFF_FU = OFF_FZ + 32768
OFF_FO = OFF_FU + 32768
OFF_FL = OFF_FO + 32768
OFF_ST2 = OFF_ZR
WS_END = OFF_FL + 256 * 1024
import struct
def f2u(x):
    return struct.unpack("<I", struct.pack("<f", x))[0]
```

```python
import sys, os
sys.path.insert(0, os.path.dirname(__file__))
import ka, kb, kc, kf
from asmlib import kernel_text, kd_text
NAME = "recurrent_scan__grouped_kv_mqa__mixer_gmlp__prompt"
ref = open(f"cdna_kernels/{NAME}.s.ref").read().split("\n")
head = [l for l in ref if l.startswith(";") and "@launch" not in l and "Override launch" not in l and "grid=ceil" not in l]
def build(extra_pre=0, extra_post=0):
    ks = [("ka_kernel", ka.gen(), 208, 208, (ka.NWG_A, 512, ka.LDS_A)),
          ("kb_kernel", kb.gen(), 256, 128, (256, 512, kb.LDS_B)),
          ("kc_kernel", kc.gen(), 224, 128, (256, 256, kc.LDS_C))]
    if not os.environ.get("NOFUSE"):
        ks = ks[:1] + [("kf_kernel", kf.gen(), 256, 128, (256, 512, kf.LDS_F))]
    if os.environ.get("KD"):
        import kd
        ks.append(("kd_kernel", kd.gen(int(os.environ["KD"])), 8, 8, (1, 256, 0)))
    out = list(head)
    L = [f"; @launch kernel={n} grid=({g},1,1) block=({b},1,1) lds={lds}" for n, _, _, _, (g, b, lds) in ks]
    E = "; @launch kernel=nop_kernel grid=(256,1,1) block=(256,1,1) lds=0"
    out += [E] * extra_pre + L + [E] * extra_post
    out.append('.amdgcn_target "amdgcn-amd-amdhsa--gfx950"')
    out.append(".text")
    txt = "\n".join(out) + "\n"
    for n, l, *_ in ks:
        txt += kernel_text(n, l)
    if extra_pre or extra_post:
        txt += kernel_text("nop_kernel", ["  s_endpgm"])
    txt += '.section .rodata,"a"\n'
    for n, l, nv, acc, _ in ks:
        txt += kd_text(n, nv, acc)
    if extra_pre or extra_post:
        txt += kd_text("nop_kernel", 8, 8)
    return txt
if __name__ == "__main__":
    dst = sys.argv[1] if len(sys.argv) > 1 else f"cdna_kernels/{NAME}.s"
    pre = int(sys.argv[2]) if len(sys.argv) > 2 else 0
    post = int(sys.argv[3]) if len(sys.argv) > 3 else 0
    open(dst, "w").write(build(pre, post))
    print("wrote", dst)
```

```python
from asmlib import Asm, OFF_DBG
def gen(spec):
    a = Asm("kd")
    pa, pb = spec.split(":")
    off = lambda p: (lambda k, wg, w, s: OFF_DBG + k * 65536 + (wg * 8 + w) * 32 + s * 4)(*map(int, p.split(",")))
    a("""
    s_memrealtime s[20:21]
    s_load_dwordx2 s[10:11], s[0:1], 96
    s_cmp_ge_u32 s2, 1
    s_cbranch_scc1 L_kd_end
    s_waitcnt lgkmcnt(0)
    """)
    if pb == "none":
        a("s_branch L_kd_end")
    a.srd(12, 10, OFF_DBG + 4 * 65536)
    a(f"v_mov_b32 v1, 0\ns_mov_b32 s22, {off(pa)}\nbuffer_load_dword v2, v1, s[12:15], s22 offen")
    if pb not in ("now", "none"):
        a(f"s_mov_b32 s22, {off(pb)}\nbuffer_load_dword v3, v1, s[12:15], s22 offen")
    else:
        a("v_mov_b32 v3, s20")
    a("""
    s_waitcnt vmcnt(0)
    v_sub_u32 v2, v3, v2
    s_nop 1
    v_readfirstlane_b32 s23, v2
    s_nop 1
    s_min_u32 s23, s23, 10000
    s_mul_i32 s23, s23, 10
    L_kd_spin:
    s_memrealtime s[24:25]
    s_waitcnt lgkmcnt(0)
    s_sub_u32 s24, s24, s20
    s_cmp_lt_u32 s24, s23
    s_cbranch_scc1 L_kd_spin
    L_kd_end:
    s_endpgm
    """)
    return a.finish(False)
```

```python
from asmlib import Asm
import os, math
from layout import *
from ka import load_args, X, WSP, BSP, OUT, WS, WO, WOUT
import p1, sys
from p1 import QX as QS, STX, LN, ZP, ACC, sRHO

SYNC = 161280
LDS_F = SYNC + 256
OP, GQ, GT, SP = 0, 73728, 147456, 0
RS, PART, GRS = 400, 25600, 208
W_H1, W_H2, W_H4, W_H5, W_AT, W_FB, W_H6, W_G1, W_G2, W_AT2, W_H3, W_H7 = (4 * k for k in range(12))

sI, sJ, sWV, sFB0, sNB, sOB0, sNBO = 34, 35, 36, 37, 38, 76, 77
SRD_WS, SRD_W, SRD_Z, SRD_S = 40, 44, 48, 52
VSY, VT0, VT1 = 120, 121, 122
SPIN = 80
ws = f"s[{SRD_WS}:{SRD_WS+3}]"
E = os.environ.get
GM = sys.modules[__name__]


def arrive(a, word, val=None, rtn=None):
    a("s_mov_b64 exec, 1")
    if val is None:
        a(f"v_mov_b32 v{VT0}, 1")
        val = VT0
    if rtn is None:
        a(f"ds_add_u32 v{VSY}, v{val} offset:{word}")
    else:
        a(f"ds_add_rtn_u32 v{rtn}, v{VSY}, v{val} offset:{word}")
    a("s_mov_b64 exec, -1")


def waitw(a, word, target, sT, mask=None):
    l = a.newlabel("w")
    a(f"s_mov_b32 s{SPIN}, 0x80000")
    a(f"{l}:")
    a(f"ds_read_b32 v{VT1}, v{VSY} offset:{word}")
    a("s_waitcnt lgkmcnt(0)")
    a(f"v_readfirstlane_b32 s{sT}, v{VT1}")
    if mask is not None:
        a(f"s_and_b32 s{sT+1}, s{sT}, {mask}")
        a(f"s_cmp_ge_u32 s{sT+1}, {target}")
    else:
        a(f"s_cmp_ge_u32 s{sT}, {target}")
    a(f"s_cbranch_scc1 {l}_d")
    a("s_sleep 1")
    a(f"s_sub_u32 s{SPIN}, s{SPIN}, 1")
    a(f"s_cbranch_scc0 {l}")
    a(f"{l}_d:")


def publish(a, word, sT, nl, vlane, s_base, shift=10, body=None):
    l = a.newlabel("p")
    arrive(a, word, rtn=VT1)
    a(f"""
    s_waitcnt lgkmcnt(0)
    v_readfirstlane_b32 s{sT}, v{VT1}
    s_cmp_eq_u32 s{sT}, 3
    s_cbranch_scc0 {l}
    """)
    if body is not None:
        body()
    else:
        a(f"""
        v_lshlrev_b32 v{VT0}, {shift}, v{vlane}
        v_mov_b32 v{VT1}, 1
        s_mov_b32 exec_lo, {hex((1 << nl) - 1)}
        s_mov_b32 exec_hi, 0
        buffer_store_dword v{VT1}, v{VT0}, {ws}, s{s_base} offen sc1
        s_mov_b64 exec, -1
        """)
    a(f"{l}:")


def gpoll(a, voff, soff, target=1):
    l = a.newlabel("g")
    a(f"""
    s_mov_b32 s{SPIN}, 0x40000
    {l}:
    buffer_load_dword v{VT1}, v{voff}, {ws}, s{soff} offen sc1
    s_waitcnt vmcnt(0)
    v_cmp_gt_u32 vcc, {target}, v{VT1}
    s_nop 4
    s_cbranch_vccz {l}_d
    s_sleep {E("PSLEEP", "3")}
    s_sub_u32 s{SPIN}, s{SPIN}, 1
    s_cbranch_scc0 {l}
    {l}_d:
    """)


class VMQ:
    def __init__(self, a):
        self.a, self.q = a, []

    def load(self, text, tag):
        self.a(text)
        self.q.append(tag)

    def need(self, tags):
        last = max((i for i, t in enumerate(self.q) if t in tags), default=-1)
        if last >= 0:
            self.a(f"s_waitcnt vmcnt({len(self.q) - 1 - last})")
            self.q = self.q[last + 1:]

    def drained(self):
        self.q = []


def gen():
    a = Asm("kg")
    a.stamp(0)
    a.loginit()
    load_args(a)
    a(f"""
    s_cmp_ge_u32 s2, 256
    s_cbranch_scc1 L_kg_end
    v_lshrrev_b32 v1, 6, v0
    s_and_b32 s{sI}, s2, 7
    s_lshl_b32 s{sI}, s{sI}, 2
    s_bfe_u32 s39, s2, 0x20003
    s_add_u32 s{sI}, s{sI}, s39
    v_readfirstlane_b32 s{sWV}, v1
    s_lshr_b32 s{sJ}, s2, 5
    s_min_u32 s39, s{sJ}, 3
    s_mul_i32 s{sFB0}, s{sJ}, 3
    s_sub_u32 s{sOB0}, s{sFB0}, s39
    s_add_u32 s{sFB0}, s{sFB0}, s39
    s_cmp_lt_u32 s{sJ}, 3
    s_cselect_b32 s{sNB}, 4, 3
    s_sub_u32 s39, s{sJ}, 3
    s_cmp_lt_u32 s39, 4
    s_cselect_b32 s{sNBO}, 3, 2
    v_and_b32 v0, 63, v0
    v_mov_b32 v{VSY}, {SYNC}
    """)
    p1.phase0(a, GM)
    a(f"""
    s_cmp_ge_u32 s{sWV}, 4
    s_cbranch_scc1 L_kg_helper
    """)
    attention(a)
    helper(a)
    fallback(a)
    a.label("L_kg_end")
    a("s_endpgm")
    return a.finish()


def Q1(n): return f"v[{6*n}:{6*n+3}]"
def Q2(n): return f"v[{6*n+4}:{6*n+5}]"
KV = [dict(k1=48, k2=52, v=54), dict(k1=62, k2=66, v=68)]
S = [80, 96]
V16, V8, VH, VQ = 76, 77, 78, 79
VO = 112
aQ, aT, aT2, aKV, aC, aPASS, aKV0, aO, aKVE, aKVR = 56, 57, 58, 60, 61, 62, 63, 64, 66, 67


def kvload(buf, k):
    b = KV[buf]
    return [f"buffer_load_dwordx4 v[{b['k1']}:{b['k1']+3}], v{V16}, {ws}, s{aKV} offen sc1",
            f"buffer_load_dwordx2 v[{b['k2']}:{b['k2']+1}], v{V8}, {ws}, s{aKV} offen offset:3072 sc1",
            f"buffer_load_dwordx4 v[{b['v']}:{b['v']+3}], v{V16}, {ws}, s{aKV} offen offset:1024 sc1",
            f"buffer_load_dwordx4 v[{b['v']+4}:{b['v']+7}], v{V16}, {ws}, s{aKV} offen offset:2048 sc1"][k]


def qk(n, buf, s):
    b = KV[buf]
    return [f"v_mfma_f32_32x32x16_bf16 v[{s}:{s+15}], v[{b['k1']}:{b['k1']+3}], {Q1(n)}, 0",
            f"v_mfma_f32_32x32x8_bf16 v[{s}:{s+15}], v[{b['k2']}:{b['k2']+1}], {Q2(n)}, v[{s}:{s+15}]"]


def pv(n, buf, s):
    b = KV[buf]
    return [f"v_mfma_f32_32x32x16_bf16 a[{16*n}:{16*n+15}], v[{b['v']}:{b['v']+3}], v[{s}:{s+3}], a[{16*n}:{16*n+15}]",
            f"v_mfma_f32_32x32x16_bf16 a[{16*n}:{16*n+15}], v[{b['v']+4}:{b['v']+7}], v[{s+4}:{s+7}], a[{16*n}:{16*n+15}]"]


kvnext = [f"s_add_u32 s{aKV}, s{aKV}, {KV_REC}", f"s_cmp_eq_u32 s{aKV}, s{aKVE}", f"s_cselect_b32 s{aKV}, s{aKV0}, s{aKV}"][:3 if E("KVROT") else 1]


def restart(a):
    a(f"s_mov_b32 s{aKV}, s{aKVR}")
    for k in range(4):
        a(kvload(0, k))
    for x in kvnext:
        a(x)
    a(kvload(1, 0))
    a(kvload(1, 1))
    for i in range(8):
        a(f"v_mov_b32 v{KV[1]['v']+i}, 0")
        a(f"v_mov_b32 v{S[1]+i}, 0")
    for n in range(8):
        a(f"v_mfma_f32_32x32x16_bf16 a[{16*n}:{16*n+15}], v[{S[1]}:{S[1]+3}], v[{S[1]}:{S[1]+3}], 0")
    a(f"s_mov_b32 s{aC}, 0")


def attention(a):
    sT, sT2 = aT, aT2
    p1.att_phase1(a, GM)
    a(f"""
    v_lshlrev_b32 v{V16}, 4, v{LN}
    v_lshlrev_b32 v{V8}, 3, v{LN}
    v_lshrrev_b32 v{VH}, 5, v{LN}
    v_and_b32 v{VQ}, 31, v{LN}
    s_lshl_b32 s{aQ}, s{sI}, 3
    s_add_u32 s{aQ}, s{aQ}, s{sJ}
    s_lshl_b32 s{aQ}, s{aQ}, 10
    s_add_u32 s{aQ}, s{aQ}, {OFF_FL}
    s_mul_i32 s{aKV0}, s{sWV}, {16*KV_REC}
    s_add_u32 s{aKV0}, s{aKV0}, {OFF_KV}
    s_mov_b32 s{aPASS}, 0
    s_mov_b32 s{aKVR}, s{aKV0}
    s_waitcnt vmcnt(4)
    s_barrier
    """)
    a.log(127)
    restart(a)
    a("s_waitcnt vmcnt(6)\ns_barrier")
    for k in range(4):
        a(f"""
        s_add_u32 s{sT}, s{sWV}, {k}
        s_and_b32 s{sT}, s{sT}, 3
        s_mul_i32 s{sT}, s{sT}, 2560
        s_add_u32 s{sT}, s{sT}, {QS}
        v_add_u32 v{S[0]+k}, s{sT}, v{V8}
        """)
    for n in range(8):
        a(f"v_mov_b32 v{6*n+4}, 0")
        a(f"v_mov_b32 v{6*n+5}, 0")
    a.log(127)
    for n in range(8):
        a(f"ds_read_b64 v[{6*n}:{6*n+1}], v{S[0]+(n>>1)} offset:{(n&1)*1280}")
        a(f"ds_read_b64 v[{6*n+2}:{6*n+3}], v{S[0]+(n>>1)} offset:{(n&1)*1280+512}")
    a("s_mov_b32 exec_hi, 0")
    for n in range(8):
        a(f"ds_read_b64 v[{6*n+4}:{6*n+5}], v{S[0]+(n>>1)} offset:{(n&1)*1280+1024}")
    a("s_mov_b32 exec_hi, -1")
    a("s_barrier")
    a.stamp(1)
    a("L_kg_at_go:")
    a("s_waitcnt vmcnt(0) lgkmcnt(0)")
    for m in qk(0, 0, S[0]):
        a(m)
    a.stamp(2)
    a.rstamp(5)
    a("s_nop 11")
    a(".p2align 3")
    a("L_kg_at_loop:")
    for tl in range(2):
        for n in range(8):
            cur, oth = S[n & 1], S[(n & 1) ^ 1]
            p = pv((n - 1) & 7, tl if n else tl ^ 1, oth)
            q = qk((n + 1) & 7, tl if n < 7 else tl ^ 1, oth)
            e = [f"v_exp_f32 v{cur+i}, v{cur+i}" for i in range(16)]
            c = [f"v_cvt_pk_bf16_f32 v{cur+i}, v{cur+2*i}, v{cur+2*i+1}" for i in range(8)]
            seq = ["s_waitcnt vmcnt(3)"] if n == 1 else []
            seq += [p[0]] + e[0:3] + [p[1]] + e[3:6]
            if n == 7:
                seq.append("s_waitcnt vmcnt(2)")
            seq += [q[0]] + e[6:9] + [q[1]] + e[9:16]
            if n == 7:
                seq += [kvload(tl, 0), kvload(tl, 1)]
            if n == 0:
                seq.append(kvload(tl ^ 1, 2))
            if n == 1:
                seq.append(kvload(tl ^ 1, 3))
                seq += kvnext
            if tl == 1 and n == 6:
                seq.append(f"s_add_u32 s{aC}, s{aC}, 1")
                seq.append(f"s_cmp_lt_u32 s{aC}, 8")
            seq += c
            for x in seq:
                a(x)
    a("s_cbranch_scc1 L_kg_at_loop")
    for m in pv(7, 1, S[1]):
        a(m)
    a.stamp(3)
    a.rstamp(6)
    a.log(127)
    s0 = S[0]
    for k in range(1, 4):
        a(f"""
        s_add_u32 s{sT}, s{sWV}, {k}
        s_and_b32 s{sT}, s{sT}, 3
        s_mul_i32 s{sT}, s{sT}, 18432
        s_add_u32 s{sT}, s{sT}, {OP + (k-1)*6144}
        v_add_u32 v{123+k}, s{sT}, v{V16}
        """)
    a(f"""
    s_mul_i32 s{sT}, s{sWV}, 18432
    v_add_u32 v118, s{sT}, v{V16}
    s_waitcnt vmcnt(0)
    """)
    waitw(a, W_H5, 4, sT)
    a.stamp(4)
    a.log(127)
    for n in range(2, 8):
        for q in range(3):
            a(f"ds_write_b128 v{123+(n>>1)}, a[{16*n+4*q}:{16*n+4*q+3}] offset:{((n&1)*3+q)*1024}")
    for n in range(8):
        a(f"v_accvgpr_read_b32 v{s0+n}, a{16*n+8}")
    a(f"""
    v_max3_f32 v{s0+8}, v{s0}, v{s0+1}, v{s0+2}
    v_min3_f32 v{s0+9}, v{s0}, v{s0+1}, v{s0+2}
    v_max3_f32 v{s0+8}, v{s0+8}, v{s0+3}, v{s0+4}
    v_min3_f32 v{s0+9}, v{s0+9}, v{s0+3}, v{s0+4}
    v_max3_f32 v{s0+8}, v{s0+8}, v{s0+5}, v{s0+6}
    v_min3_f32 v{s0+9}, v{s0+9}, v{s0+5}, v{s0+6}
    v_max_f32 v{s0+8}, v{s0+8}, v{s0+7}
    v_min_f32 v{s0+9}, v{s0+9}, v{s0+7}
    v_cmp_lt_f32 vcc, {f2u(2.0**60):#x}, v{s0+8}
    s_mov_b32 s{sT2}, vcc_hi
    v_cmp_gt_f32 vcc, {f2u(2.0**-60):#x}, v{s0+9}
    s_or_b32 s{sT2}, s{sT2}, vcc_hi
    s_cmp_lg_u32 s{sT2}, 0
    s_cselect_b32 s{sT2}, 0x10001, 1
    s_cmp_lg_u32 s{aPASS}, 0
    s_cselect_b32 s{sT2}, 1, s{sT2}
    v_mov_b32 v{VT0}, s{sT2}
    """)
    arrive(a, W_AT, VT0)
    a.log(127)
    OWN = 84
    for t in range(2):
        for k in range(12):
            a(f"v_accvgpr_read_b32 v{OWN+12*t+k}, a{16*t+k}")
    sW = [68, 69, 70]
    a(f"""
    s_mul_i32 s{sT}, s{sOB0}, 94
    s_mul_i32 s{sT2}, s{sWV}, 10
    s_add_u32 s{sT}, s{sT}, s{sT2}
    s_lshl_b32 s{sT}, s{sT}, 10
    s_add_u32 s{sW[0]}, s{sT}, {OFF_WT}
    s_add_u32 s{sW[1]}, s{sW[0]}, {94*1024}
    s_add_u32 s{sW[2]}, s{sW[0]}, {2*94*1024}
    s_lshl_b32 s65, s{aPASS}, 2
    s_add_u32 s65, s65, 4
    v_mov_b32 v119, v{V16}
    s_waitcnt lgkmcnt(0)
    """)

    def woload(kp, b):
        return f"buffer_load_dwordx4 a[{12*kp+4*b}:{12*kp+4*b+3}], v119, {ws}, s{sW[b]} offen offset:{1024*(kp&3)} sc1"

    def wo_part(lo, hi):
        l = a.newlabel("wo")
        for b in range(3):
            if b == 2:
                a(f"s_cmp_eq_u32 s{sNBO}, 2\ns_cbranch_scc1 {l}")
            for kp in range(lo, hi):
                a(woload(kp, b))
                if kp & 3 == 3:
                    a(f"s_add_u32 s{sW[b]}, s{sW[b]}, 4096")
        a(f"{l}:")

    wo_part(0, 4)
    a(f"""
    s_lshr_b32 s{sT}, s{sWV}, 1
    s_lshl_b32 s{sT2}, s{sI}, 1
    s_add_u32 s{sT}, s{sT}, s{sT2}
    s_mul_i32 s{aO}, s{sT}, 40960
    s_add_u32 s{aO}, s{aO}, {OFF_OF}
    s_and_b32 s{sT}, s{sWV}, 1
    s_mul_i32 s{sT}, s{sT}, 10
    s_mul_i32 s{sT2}, s{sJ}, 20
    s_add_u32 s{sT}, s{sT}, s{sT2}
    v_add_u32 v{108}, s{sT}, v{VH}
    """)
    for t in range(2):
        for q in range(3):
            r = VO + 3*t + q
            g = 108 + 1
            a(f"""
            v_add_u32 v{g}, {5*t + 2*q}, v{108}
            v_lshrrev_b32 v{g+1}, 2, v{g}
            v_lshlrev_b32 v{r}, 10, v{g+1}
            v_and_b32 v{g+1}, 1, v{g}
            v_lshl_add_u32 v{r}, v{g+1}, 9, v{r}
            v_bfe_u32 v{g+1}, v{g}, 1, 1
            v_lshl_add_u32 v{r}, v{g+1}, 3, v{r}
            v_lshl_add_u32 v{r}, v{VQ}, 4, v{r}
            """)
    a.log(127)
    waitw(a, W_AT, "s65", sT, mask="0xffff")
    a(f"""
    s_lshr_b32 s{sT}, s{sT}, 16
    s_cmp_lg_u32 s{sT}, 0
    s_cselect_b32 s{sT}, 1, 0
    s_cmp_lt_u32 s{aPASS}, s{sT}
    s_cbranch_scc1 L_kg_fallback
    """)
    a.stamp(5)
    a.log(127)
    for src in range(3):
        for k in range(6):
            r = (src * 6 + k) * 4
            a(f"ds_read_b128 v[{r}:{r+3}], v118 offset:{src*6144 + k*1024}")
    for src in range(3):
        a(f"s_waitcnt lgkmcnt({12 - 6*src})")
        for k in range(24):
            a(f"v_add_f32 v{OWN+k}, v{OWN+k}, v{24*src+k}")
    a(f"""
    v_mov_b32 v0, v{OWN+8}
    v_mov_b32 v1, v{OWN+8}
    v_mov_b32 v2, v{OWN+20}
    v_mov_b32 v3, v{OWN+20}
    s_nop 0
    v_permlane32_swap_b32 v0, v1
    v_permlane32_swap_b32 v2, v3
    v_rcp_f32 v0, v1
    v_rcp_f32 v2, v3
    """)
    for t in range(2):
        for k in range(12):
            a(f"v_mul_f32 v{OWN+12*t+k}, v{2*t}, v{OWN+12*t+k}")
    for k in range(12):
        a(f"v_cvt_pk_bf16_f32 v{4+k}, v{OWN+2*k}, v{OWN+2*k+1}")
    a.log(127)
    for t in range(2):
        for q in range(2):
            a(f"buffer_store_dwordx2 v[{4+6*t+2*q}:{5+6*t+2*q}], v{VO+3*t+q}, {ws}, s{aO} offen sc1")
    a("s_mov_b32 exec_hi, 0")
    for t in range(2):
        a(f"buffer_store_dwordx2 v[{4+6*t+4}:{5+6*t+4}], v{VO+3*t+2}, {ws}, s{aO} offen sc1")
    a(f"""
    s_mov_b32 exec_hi, -1
    s_lshl_b32 s71, s{sI}, 13
    s_lshl_b32 s{sT}, s{sJ}, 2
    s_add_u32 s72, s71, s{sT}
    s_add_u32 s72, s72, {OFF_FL + 768}
    s_add_u32 s71, s{aQ}, 768
    v_and_b32 v123, 7, v{VQ}
    v_lshlrev_b32 v123, 2, v123
    v_mul_u32_u24 v124, {RS}, v{VQ}
    v_lshl_add_u32 v124, v{VH}, 4, v124
    s_mul_i32 s{sT}, s{sWV}, {PART}
    v_add_u32 v124, s{sT}, v124
    s_waitcnt vmcnt(0)
    """)
    a.log(127)
    publish(a, W_AT2, sT, 8, VQ, 72)
    a.log(127)
    wo_part(4, 10)
    sA0, sA1 = 73, 74
    a(f"""
    s_mul_i32 s{sA0}, s{sI}, {2*40960}
    s_mul_i32 s{sT}, s{sWV}, 10240
    s_add_u32 s{sA0}, s{sA0}, s{sT}
    s_add_u32 s{sA0}, s{sA0}, {OFF_OF}
    s_add_u32 s{sA1}, s{sA0}, 40960
    """)
    a.log(127)
    a(f"s_mul_i32 s{sT}, s{sI}, {2*40960}\ns_add_u32 s{sT}, s{sT}, {OFF_OF}")
    a.srd(SRD_S, WS, 2 * 40960, add=f"s{sT}")
    gpoll(a, 123, 71)
    if E("T4"):
        a(f"""
        s_lshl_b32 s{sT}, s{sWV}, 3
        s_add_u32 s{sT}, s{sT}, s{sJ}
        s_lshl_b32 s{sT}, s{sT}, 13
        v_lshlrev_b32 v123, 3, v119
        s_cmp_ge_u32 s{sWV}, 2
        s_cbranch_scc1 L_kg_not4
        buffer_load_dword v126, v123, s[{SRD_S}:{SRD_S+3}], s{sT} offen sc1
        L_kg_not4:
        """)
    a.stamp(6)
    a.log(127)
    a(f"s_cmp_eq_u32 s{sNBO}, 2\ns_cbranch_scc1 L_kg_s2")
    RING = ["v[96:99]", "v[100:103]", "v[104:107]", "v[108:111]", "v[112:115]", "v[116:119]", "a[120:123]", "a[124:127]"]
    for nb in (3, 2):
        if nb == 2:
            a("L_kg_s2:")
        a("v_mov_b32 v125, v119")
        vq = VMQ(a)

        def oload(kp):
            if kp and kp & 3 == 0:
                a(f"s_add_u32 s{sA0}, s{sA0}, 4096\ns_add_u32 s{sA1}, s{sA1}, 4096")
            for tb in range(2):
                vq.load(f"buffer_load_dwordx4 {RING[2*(kp&3)+tb]}, v125, {ws}, s{sA0+tb} offen offset:{1024*(kp&3)} sc1", kp)
        for kp in range(4):
            oload(kp)
        for kp in range(10):
            vq.need([kp])
            for b in range(nb):
                for tb in range(2):
                    ac = (2 * b + tb) * 16
                    a(f"v_mfma_f32_32x32x16_bf16 v[{ac}:{ac+15}], a[{12*kp+4*b}:{12*kp+4*b+3}], {RING[2*(kp&3)+tb]}, " + (f"v[{ac}:{ac+15}]" if kp else "0"))
            if kp + 4 < 10:
                oload(kp + 4)
        a.log(127)
        waitw(a, W_G2, 4, sT)
        a.log(127)
        for b in range(nb):
            for tb in range(2):
                for q in range(4):
                    ac = (2 * b + tb) * 16 + 4 * q
                    a(f"ds_write_b128 v124, v[{ac}:{ac+3}] offset:{SP + tb*32*RS + b*128 + q*32}")
        a.log(127)
        a("s_waitcnt lgkmcnt(0)\ns_barrier")
        a("s_branch L_kg_f_end")


def fallback(a):
    sT = aT
    a("L_kg_fallback:")
    a(f"s_mov_b32 s{aKV}, s{aKV0}")
    a(f"s_mov_b32 s{aC}, 0")
    a("s_waitcnt vmcnt(0)")
    MX = 54
    for n in range(8):
        a(f"v_mov_b32 v{MX+n}, 0xff800000")
    a("L_kg_fb_loop:")
    a(kvload(0, 0))
    a(kvload(0, 1))
    a(f"s_add_u32 s{aKV}, s{aKV}, {KV_REC}")
    a("s_waitcnt vmcnt(0)")
    for n in range(8):
        for m in qk(n, 0, S[0]):
            a(m)
        for k in range(0, 16, 2):
            a(f"v_max3_f32 v{MX+n}, v{MX+n}, v{S[0]+k}, v{S[0]+k+1}")
    a(f"""
    s_add_u32 s{aC}, s{aC}, 1
    s_cmp_lt_u32 s{aC}, 16
    s_cbranch_scc1 L_kg_fb_loop
    s_lshl_b32 s{aT2}, s{sWV}, 11
    v_lshrrev_b32 v{S[1]}, 2, v{V16}
    """)
    for k in range(4):
        a(f"""
        s_add_u32 s{sT}, s{sWV}, {k}
        s_and_b32 s{sT}, s{sT}, 3
        s_lshl_b32 s{sT}, s{sT}, 9
        v_add_u32 v{S[1]+1+k}, s{sT}, v{S[1]}
        v_add_u32 v{S[1]+5+k}, s{aT2}, v{S[1]+1+k}
        """)
    for n in range(8):
        a(f"v_mov_b32 v{S[0]+n}, v{MX+n}")
    for n in range(8):
        a(f"v_permlane32_swap_b32 v{S[0]+n}, v{MX+n}")
    for n in range(8):
        a(f"v_max_f32 v{MX+n}, v{MX+n}, v{S[0]+n}")
        a(f"ds_write_b32 v{S[1]+5+(n>>1)}, v{MX+n} offset:{OP + 256*(n&1)}")
    arrive(a, W_FB)
    waitw(a, W_FB, 4, sT)
    for n in range(8):
        for src in range(4):
            a(f"ds_read_b32 v{S[0]+src}, v{S[1]+1+(n>>1)} offset:{OP + 2048*src + 256*(n&1)}")
        t = S[0]
        a(f"""
        s_waitcnt lgkmcnt(0)
        v_max3_f32 v{t}, v{t}, v{t+1}, v{t+2}
        v_max_f32 v{t}, v{t}, v{t+3}
        v_sub_f32 v{t}, 0, v{t}
        v_and_b32 v{t+1}, 0xffff0000, v{t}
        v_sub_f32 v{t}, v{t}, v{t+1}
        v_and_b32 v{t+2}, 0xffff0000, v{t}
        v_sub_f32 v{t}, v{t}, v{t+2}
        v_lshrrev_b32 v{t+1}, 16, v{t+1}
        s_mov_b32 exec_lo, 0
        v_or_b32 v{6*n+4}, v{t+1}, v{t+2}
        v_lshrrev_b32 v{6*n+5}, 16, v{t}
        s_mov_b32 exec_lo, -1
        """)
    arrive(a, W_FB)
    waitw(a, W_FB, 8, sT)
    a(f"s_mov_b32 s{aPASS}, 1")
    restart(a)
    a("s_waitcnt vmcnt(0)")
    a("s_branch L_kg_at_go")


def helper(a):
    sHW, sT, sT2, sZo, sWo, sC, sX, sHR, sU = 56, 57, 58, 60, 61, 62, 64, 65, 66
    VD = [50 + i for i in range(8)]
    WA = [58, 59, 60, 61]
    H16, HH, HL = 116, 114, 115
    Z1 = 96
    BI = 112
    a("L_kg_helper:")
    p1.hlp_phase1(a, GM)
    sKAP, sOP = 63, 67
    for k in range(4):
        a(f"ds_read_b64 v[{32+2*k}:{33+2*k}], v6 offset:{512*k}")
    a.srd(SRD_Z, WS, 128 * 27 * 1024, add=OFF_ZN)
    a(f"""
    s_setprio {E("HPRIO0", "3")}
    s_lshl_b32 s{sHR}, s{sHW}, 15
    v_mov_b32 v0, v{LN}
    v_and_b32 v115, 31, v0
    v_lshrrev_b32 v114, 5, v0
    s_add_u32 s{sT}, s{sHR}, 16384
    v_lshlrev_b32 v7, 6, v115
    v_lshl_add_u32 v7, v114, 3, v7
    v_add_u32 v7, s{sT}, v7
    v_bfe_u32 v8, v0, 2, 2
    v_lshl_add_u32 v8, v114, 3, v8
    v_lshlrev_b32 v8, 6, v8
    v_bfe_u32 v9, v0, 4, 1
    v_lshl_add_u32 v8, v9, 5, v8
    v_and_b32 v9, 3, v0
    v_lshl_add_u32 v8, v9, 3, v8
    v_add_u32 v8, s{sT}, v8
    v_lshlrev_b32 v116, 4, v0
    s_mov_b32 s{sT}, {f2u(1/864):#x}
    s_waitcnt lgkmcnt(0)
    v_add_f32 v32, v32, v34
    v_add_f32 v33, v33, v35
    v_add_f32 v36, v36, v38
    v_add_f32 v37, v37, v39
    v_add_f32 v32, v32, v36
    v_add_f32 v33, v33, v37
    v_mul_f32 v32, s{sT}, v32
    v_mul_f32 v33, s{sT}, v33
    v_fma_f32 v33, -v32, v32, v33
    v_max_f32 v33, 0, v33
    v_add_f32 v33, {f2u(1e-5):#x}, v33
    v_rsq_f32 v34, v33
    s_cmp_eq_u32 s78, 0
    v_mul_f32 v35, -v32, v34
    v_mov_b32 v36, v34
    v_mov_b32 v37, v35
    s_cbranch_scc1 L_kg_h_nonorm
    v_permlane32_swap_b32 v34, v36
    v_permlane32_swap_b32 v35, v37
    """)
    for sb in range(2):
        ab = 34 + 2 * sb
        for k in range(8):
            a(f"v_lshlrev_b32 v{48+2*k}, 16, v{ZP+8*sb+k}")
            a(f"v_and_b32 v{49+2*k}, s75, v{ZP+8*sb+k}")
        for k in range(16):
            a(f"v_fma_f32 v{48+k}, v{48+k}, v{ab}, v{ab+1}")
        for k in range(8):
            a(f"v_cvt_pk_bf16_f32 v{16+8*sb+k}, v{48+2*k}, v{49+2*k}")
        for q in range(4):
            a(f"ds_write_b64 v7, v[{16+8*sb+2*q}:{17+8*sb+2*q}] offset:{2048*sb+16*q}")
    a(f"""
    s_mul_i32 s{sT}, s{sI}, {4*27}
    s_add_u32 s{sT}, s{sT}, s79
    s_add_u32 s{sT}, s{sT}, s{sHW}
    s_lshl_b32 s{sT}, s{sT}, 10
    s_waitcnt lgkmcnt(0)
    """)
    for kl in range(4):
        a(f"ds_read_b64_tr_b16 v[{48+4*kl}:{49+4*kl}], v8 offset:{1024*kl}")
        a(f"ds_read_b64_tr_b16 v[{50+4*kl}:{51+4*kl}], v8 offset:{1024*kl+256}")
    for kl in range(4):
        a(f"s_waitcnt lgkmcnt({6-2*kl})")
        a(f"buffer_store_dwordx4 v[{48+4*kl}:{51+4*kl}], v116, s[{SRD_Z}:{SRD_Z+3}], s{sT} offen sc1")
        if kl < 3:
            a(f"s_add_u32 s{sT}, s{sT}, {27*1024}")
    a("L_kg_h_nonorm:")
    a.stamp(2)
    for r in range(4):
        a(f"v_mov_b32 v{12+r}, 0")
    for n in range(8):
        a(f"v_mfma_f32_32x32x16_bf16 a[{16*n}:{16*n+15}], v[12:15], v[12:15], 0")

    LA = int(E("LA", "2"))
    WSCH = {1: [2, 2, 2, 2], 2: [3, 3, 2, 0], 3: [4, 4, 0, 0]}[LA]
    sZ0, sZE, sW0, sWE, sMW, sHZ = 68, 69, 70, 71, 72, 73
    FW = [0, 8]
    FZ = [16, 32]
    ZA = 48

    def wdma(i):
        return f"buffer_load_dwordx4 v{VD[i]}, s[{SRD_W}:{SRD_W+3}], s{sWo} offen offset:{1024*(i&3)} lds"

    def wpieces(lo, hi):
        out = []
        for i in range(lo, hi):
            if i == lo or i == 4:
                out.append(f"s_add_u32 m0, s{sMW}, {4096*(i>>2)}")
            out.append(wdma(i))
        if hi == 8:
            out += [f"s_add_u32 s{sWo}, s{sWo}, 128", f"s_cmp_eq_u32 s{sWo}, s{sWE}", f"s_cselect_b32 s{sWo}, s{sW0}, s{sWo}",
                    f"s_xor_b32 s{sMW}, s{sMW}, 8192"]
        return out

    def zdma(slot, nb):
        out = [f"s_add_u32 m0, s{sHZ}, {4096*slot}"]
        out += [f"buffer_load_dwordx4 v{H16}, s[{SRD_Z}:{SRD_Z+3}], s{sZo} offen offset:{1024*b} sc1 lds" for b in range(nb)]
        out += [f"s_add_u32 s{sZo}, s{sZo}, {27*1024}", f"s_cmp_eq_u32 s{sZo}, s{sZE}", f"s_cselect_b32 s{sZo}, s{sZ0}, s{sZo}"]
        return out

    a(f"""
    v_lshrrev_b32 v2, 3, v0
    v_and_b32 v3, 7, v0
    v_lshrrev_b32 v4, 4, v0
    v_xor_b32 v4, v4, v3
    v_lshlrev_b32 v4, 4, v4
    v_lshl_add_u32 v{VD[0]}, v2, 12, v4
    v_xor_b32 v4, 64, v{VD[0]}
    v_add_u32 v{VD[1]}, {32768-1024}, v4
    v_add_u32 v{VD[2]}, {2*(32768-1024)}, v{VD[0]}
    v_add_u32 v{VD[3]}, {3*(32768-1024)}, v4
    v_add_u32 v{VD[4]}, {4*32768}, v{VD[0]}
    v_add_u32 v{VD[5]}, {4*32768}, v{VD[1]}
    v_add_u32 v{VD[6]}, {4*32768}, v{VD[2]}
    v_add_u32 v{VD[7]}, {4*32768}, v{VD[3]}
    v_bfe_u32 v4, v0, 1, 3
    v_xor_b32 v4, v4, v{HH}
    v_lshlrev_b32 v4, 4, v4
    v_lshl_add_u32 v4, v{HL}, 7, v4
    v_add_u32 v{WA[0]}, s{sHR}, v4
    v_xor_b32 v{WA[1]}, 32, v{WA[0]}
    v_xor_b32 v{WA[2]}, 64, v{WA[0]}
    v_xor_b32 v{WA[3]}, 96, v{WA[0]}
    s_lshl_b32 s{sT}, s{sI}, 18
    """)
    a.srd(SRD_W, WSP, 64 * 4096, add=f"s{sT}")
    a(f"""
    s_lshl_b32 s74, s{sRHO}, 10
    s_add_u32 s74, s74, {OFF_FL + 256 - 1024}
    s_lshl_b32 s78, s{sI}, 3
    s_add_u32 s78, s78, s{sJ}
    s_lshl_b32 s78, s78, 10
    s_add_u32 s78, s78, {OFF_FL + 256}
    s_lshl_b32 s{sWo}, s{sHW}, 10
    s_waitcnt vmcnt(0)
    """)
    a.stamp(3)

    def zflags():
        a(f"""
        v_bfe_u32 v{VT1}, v0, 3, 1
        v_xor_b32 v{VT1}, 1, v{VT1}
        v_and_b32 v{VT0}, 7, v0
        v_lshlrev_b32 v{VT0}, 15, v{VT0}
        v_lshl_add_u32 v{VT0}, v{VT1}, 10, v{VT0}
        v_mov_b32 v{VT1}, 1
        s_sub_u32 s{sT}, s{sRHO}, 1
        s_cmp_lt_u32 s{sT}, 3
        s_movk_i32 s{sT}, 0xff
        s_cselect_b32 exec_lo, 0xffff, s{sT}
        s_mov_b32 exec_hi, 0
        buffer_atomic_add v{VT1}, v{VT0}, {ws}, s74 offen sc1
        s_mov_b64 exec, -1
        """)
    publish(a, W_H2, sT, 0, 0, 0, body=zflags)
    a(f"""
    s_lshl_b32 s{sU}, s2, 2
    s_add_u32 s{sU}, s{sU}, s{sHW}
    s_min_u32 s{sT}, s{sU}, 939
    s_mul_i32 s{sKAP}, s{sT}, 6554
    s_lshr_b32 s{sKAP}, s{sKAP}, 16
    s_mul_i32 s{sOP}, s{sKAP}, 10
    s_sub_u32 s{sOP}, s{sT}, s{sOP}
    s_sub_u32 s{sT}, s{sKAP}, 40
    s_cmp_lt_u32 s{sKAP}, 40
    s_cselect_b32 s{sT}, s{sKAP}, s{sT}
    s_cselect_b32 s{SRD_S}, s{WO}, s{WOUT}
    s_cselect_b32 s{SRD_S+1}, s{WO+1}, s{WOUT+1}
    s_mov_b32 s{SRD_S+2}, {864*1280}
    s_cselect_b32 s{SRD_S+2}, {640*1280}, s{SRD_S+2}
    s_and_b32 s{SRD_S+1}, s{SRD_S+1}, 0xffff
    s_mov_b32 s{SRD_S+3}, 0x20000
    s_mul_i32 s{sT}, s{sT}, {16*1280}
    s_lshl_b32 s{sT2}, s{sOP}, 7
    s_add_u32 s{sT}, s{sT}, s{sT2}
    v_bfe_u32 v2, v0, 4, 1
    v_lshlrev_b32 v2, 2, v2
    v_and_b32 v3, 7, v0
    v_xor_b32 v2, v2, v3
    v_lshrrev_b32 v3, 3, v0
    v_mul_u32_u24 v3, 1280, v3
    v_lshl_add_u32 v2, v2, 4, v3
    v_add_u32 v3, {10240 - 1024}, v2
    s_add_u32 m0, s{sHR}, 28672
    buffer_load_dwordx4 v2, s[{SRD_S}:{SRD_S+3}], s{sT} offen lds
    buffer_load_dwordx4 v3, s[{SRD_S}:{SRD_S+3}], s{sT} offen offset:1024 lds
    v_lshlrev_b32 v2, 1, v115
    s_lshl_b32 s74, s{sI}, 7
    """)
    a.srd(SRD_S, BSP, 4096)
    a(f"""
    buffer_load_ushort v{BI}, v2, s[{SRD_S}:{SRD_S+3}], s74 offen
    buffer_load_ushort v{BI+1}, v2, s[{SRD_S}:{SRD_S+3}], s74 offen offset:64
    """)
    rot = 1 if E("HROT") else 0
    a(f"""
    s_mov_b32 s{sC}, 0
    s_and_b32 s74, s{sI}, 3
    s_lshl_b32 s74, s74, 1
    s_add_u32 s74, s74, s{sJ}
    s_and_b32 s74, s74, {7 * rot}
    s_mov_b32 s{sW0}, s{sWo}
    s_add_u32 s{sWE}, s{sWo}, 1024
    s_lshl_b32 s75, s74, 7
    s_add_u32 s{sWo}, s{sWo}, s75
    s_mov_b32 s{sMW}, s{sHR}
    s_add_u32 s{sHZ}, s{sHR}, 16384
    """)
    for x in wpieces(0, 8):
        a(x)
    a(f"s_setprio {E('HPRIO1', '3')}")
    p1.gelu(a)
    for r in range(16):
        a(f"v_cvt_pk_bf16_f32 v{Z1+r}, v{ACC+2*r}, v{ACC+2*r+1}")
    a(f"""
    v_mov_b32 v0, v{LN}
    s_waitcnt vmcnt(8)
    v_lshlrev_b32 v{BI}, 16, v{BI}
    v_lshlrev_b32 v{BI+1}, 16, v{BI+1}
    """)
    a(f"""
    s_cmp_ge_u32 s{sU}, 940
    s_cbranch_scc1 L_kg_h_notr
    v_bfe_u32 v5, v0, 2, 2
    v_lshl_add_u32 v4, v{HH}, 2, v5
    v_lshlrev_b32 v4, 7, v4
    v_bfe_u32 v5, v0, 4, 1
    v_lshl_add_u32 v4, v5, 5, v4
    v_and_b32 v5, 3, v0
    v_lshl_add_u32 v4, v5, 3, v4
    v_bfe_u32 v5, v0, 3, 1
    v_lshl_add_u32 v4, v5, 6, v4
    s_add_u32 s{sT2}, s{sHR}, 28672
    v_add_u32 v4, s{sT2}, v4
    v_xor_b32 v5, 64, v4
    ds_read_b64_tr_b16 v[32:33], v4
    ds_read_b64_tr_b16 v[34:35], v4 offset:1024
    ds_read_b64_tr_b16 v[36:37], v5
    ds_read_b64_tr_b16 v[38:39], v5 offset:1024
    s_mul_i32 s{sT}, s{sOP}, {2*94}
    s_add_u32 s{sT}, s{sT}, s{sKAP}
    s_lshl_b32 s{sT}, s{sT}, 10
    s_add_u32 s{sT}, s{sT}, {OFF_WT}
    s_add_u32 s{sT2}, s{sT}, {94*1024}
    s_waitcnt lgkmcnt(2)
    buffer_store_dwordx4 v[32:35], v{H16}, {ws}, s{sT} offen sc1
    s_waitcnt lgkmcnt(0)
    buffer_store_dwordx4 v[36:39], v{H16}, {ws}, s{sT2} offen sc1
    L_kg_h_notr:
    s_add_u32 s{sU}, s{sFB0}, s{sHW}
    """)
    a(f"""
    s_mul_i32 s{sZ0}, s{sHW}, {32*27}
    s_add_u32 s{sZ0}, s{sZ0}, s{sFB0}
    s_lshl_b32 s{sZ0}, s{sZ0}, 10
    s_add_u32 s{sZE}, s{sZ0}, {32*27*1024}
    s_mul_i32 s75, s74, {4*27*1024}
    s_add_u32 s{sZo}, s{sZ0}, s75
    v_add_u32 v{ZA}, s{sHZ}, v{H16}
    s_cmp_lt_u32 s{sJ}, 3
    s_cselect_b32 s64, 64, 32
    v_mov_b32 v49, 0
    s_and_b32 s59, s{sI}, 3
    s_lshl_b32 s59, s59, 13
    s_sub_u32 s59, s78, s59
    """)
    gpoll(a, 49, 59, "s64")
    publish(a, W_H7, sT, 0, 0, 0, body=lambda: p1.dbg_add(a, GM, 8, sT))
    a(f"s_setprio {E('HPRIO', '0')}")
    a.stamp(4)
    a(f"""
    s_cmp_eq_u32 s{sNB}, 3
    s_cbranch_scc1 L_kg_h_main3
    """)

    def freads(buf, kp, nb):
        r = [f"ds_read_b128 v[{FW[buf]}:{FW[buf]+3}], v{WA[kp]}",
             f"ds_read_b128 v[{FZ[buf]}:{FZ[buf]+3}], v{ZA} offset:{4096*kp}",
             f"ds_read_b128 v[{FW[buf]+4}:{FW[buf]+7}], v{WA[kp]} offset:4096"]
        r += [f"ds_read_b128 v[{FZ[buf]+4*b}:{FZ[buf]+4*b+3}], v{ZA} offset:{4096*kp+1024*b}" for b in range(1, nb)]
        return r

    def main(nb):
        a(f"L_kg_h_main{nb}:")
        for k in range(LA + 1):
            for x in zdma(k, nb):
                a(x)
        for x in wpieces(0, WSCH[0]):
            a(x)
        a(f"s_waitcnt vmcnt({LA*nb + WSCH[0]})")
        for r in freads(0, 0, nb):
            a(r)
        a(f"v_xor_b32 v{WA[0]}, 8192, v{WA[0]}")
        wn = lambda kp: WSCH[(kp + 1) & 3]
        a(f"L_kg_h_loop{nb}:")
        for kp in range(4):
            buf = kp & 1
            allowed = sum(nb + wn((kp - d) & 3) for d in range(1, LA))
            pre = []
            if kp == 3:
                pre += [f"s_add_u32 s{sC}, s{sC}, 1", f"s_cmp_ge_u32 s{sC}, 7", f"s_cselect_b32 s{SRD_W+2}, 0, s{SRD_W+2}"]
            if kp == (31 - LA) & 3:
                pre += [f"s_cmp_ge_u32 s{sC}, {((31 - LA) >> 2) + (1 if kp == 3 else 0)}", f"s_cselect_b32 s{SRD_Z+2}, 0, s{SRD_Z+2}"]
            for x in pre:
                a(x)
            a(f"s_waitcnt vmcnt({allowed}) lgkmcnt(0)")
            lo = sum(WSCH[:(kp + 1) & 3])
            rd = freads(buf ^ 1, (kp + 1) & 3, nb)
            fill = rd + zdma((kp + LA + 1) & 3, nb) + (wpieces(lo, lo + wn(kp)) if wn(kp) else [])
            fill.insert(len(rd), f"v_xor_b32 v{WA[(kp + 1) & 3]}, 8192, v{WA[(kp + 1) & 3]}")
            nm = 2 * nb
            k = 0
            for m in range(nm):
                b, tb = m >> 1, m & 1
                ac = m * 16
                a(f"v_mfma_f32_32x32x16_bf16 a[{ac}:{ac+15}], v[{FZ[buf]+4*b}:{FZ[buf]+4*b+3}], v[{FW[buf]+4*tb}:{FW[buf]+4*tb+3}], a[{ac}:{ac+15}]")
                e = (len(fill) * (m + 1) + nm - 1) // nm
                for x in fill[k:e]:
                    a(x)
                k = e
        a(f"""
        s_cmp_lt_u32 s{sC}, 8
        s_cbranch_scc1 L_kg_h_loop{nb}
        """)

    main(4)
    a("s_branch L_kg_h_epi")
    main(3)
    a("L_kg_h_epi:")
    a.stamp(5)
    a.log(127)
    a(f"""
    s_setprio {E("HPRIO2", "2")}
    s_waitcnt vmcnt(0) lgkmcnt(0)
    v_add_u32 v2, s{sHR}, v{H16}
    """)
    a.srd(SRD_W, WS, 20 * 94 * 1024, add=OFF_WT)
    if E("T2"):
        a(f"""
        s_and_b32 s{sT}, s{sI}, 3
        s_lshl_b32 s{sT}, s{sT}, 2
        s_add_u32 s{sT}, s{sT}, s{sHW}
        s_lshl_b32 s{sT}, s{sT}, 13
        s_mul_i32 s74, s{sOB0}, {94*1024}
        s_add_u32 s{sT}, s{sT}, s74
        v_lshlrev_b32 v3, 3, v{H16}
        buffer_load_dword v114, v3, s[{SRD_W}:{SRD_W+3}], s{sT} offen
        s_add_u32 s{sT}, s{sT}, {16*8192}
        buffer_load_dword v114, v3, s[{SRD_W}:{SRD_W+3}], s{sT} offen
        s_add_u32 s{sT}, s{sT}, {16*8192}
        s_cmp_eq_u32 s{sNBO}, 2
        s_cbranch_scc1 L_kg_h_not2
        buffer_load_dword v114, v3, s[{SRD_W}:{SRD_W+3}], s{sT} offen
        L_kg_h_not2:
        """)
    p1.dbg_check_issue(a, GM, 8, 118)
    for k in range(32):
        if k == 24:
            a(f"s_cmp_eq_u32 s{sNB}, 3\ns_cbranch_scc1 L_kg_h_w3")
        a(f"ds_write_b128 v2, a[{4*k}:{4*k+3}] offset:{1024*k}")
    a("L_kg_h_w3:")
    arrive(a, W_H4)
    a(f"""
    s_lshl_b32 s{sT}, s{sHW}, 13
    v_add_u32 v0, s{sT}, v{H16}
    v_add_u32 v1, 65536, v0
    s_mul_i32 s{sT2}, s{sI}, {2*54}
    s_lshl_b32 s{sU}, s{sU}, 1
    s_add_u32 s{sU}, s{sU}, s{sT2}
    s_lshl_b32 s{sU}, s{sU}, 10
    s_add_u32 s{sU}, s{sU}, {OFF_U}
    s_mov_b32 s75, 0xffff0000
    """)
    a.log(127)
    p1.dbg_check_wait(a, GM, 8, 118)
    waitw(a, W_H4, 4, sT)
    a.log(127)
    a(f"""
    s_cmp_ge_u32 s{sHW}, s{sNB}
    s_cbranch_scc1 L_kg_h_done
    """)
    for tb in range(2):
        for src in range(4):
            for q in range(4):
                r = 16 + src * 16 + 4 * q
                a(f"ds_read_b128 v[{r}:{r+3}], v{src >> 1} offset:{(src & 1)*32768 + tb*4096 + q*1024}")
        for src in range(1, 4):
            a(f"s_waitcnt lgkmcnt({12 - 4*src})")
            if tb == 1 and src == 3:
                arrive(a, W_H5)
            for k in range(16):
                a(f"v_add_f32 v{16+k}, v{16+k}, v{16+16*src+k}")
        for k in range(16):
            a(f"v_add_f32 v{16+k}, v{16+k}, v{BI+tb}")
        for k in range(8):
            a(f"v_lshlrev_b32 v{32+2*k}, 16, v{Z1+8*tb+k}")
            a(f"v_and_b32 v{33+2*k}, s75, v{Z1+8*tb+k}")
        for k in range(16):
            a(f"v_mul_f32 v{16+k}, v{16+k}, v{32+k}")
        for k in range(8):
            a(f"v_cvt_pk_bf16_f32 v{4+k}, v{16+2*k}, v{17+2*k}")
        a(f"buffer_store_dwordx4 v[4:7], v{H16}, {ws}, s{sU} offen sc1")
        a(f"buffer_store_dwordx4 v[8:11], v{H16}, {ws}, s{sU} offen offset:1024 sc1")
        if tb == 0:
            a(f"s_add_u32 s{sU}, s{sU}, {54*1024}")
    a("s_branch L_kg_h_pub")
    a("L_kg_h_done:")
    arrive(a, W_H5)
    a("L_kg_h_pub:")
    a.log(127)
    sA, sW = 68, [69, 70, 71]
    WL = 95
    a(f"""
    s_lshl_b32 s72, s{sI}, 13
    s_lshl_b32 s{sT}, s{sJ}, 2
    s_add_u32 s73, s72, s{sT}
    s_add_u32 s73, s73, {OFF_FL + 640}
    s_add_u32 s72, s78, {640 - 256}
    s_lshl_b32 s{sT}, s{sHW}, 3
    v_add_u32 v80, s{sT}, v{HL}
    v_and_b32 v80, 31, v80
    v_lshl_add_u32 v80, v{HH}, 5, v80
    v_lshlrev_b32 v{WL}, 4, v80
    v_and_b32 v81, 7, v{HL}
    v_lshlrev_b32 v81, 2, v81
    s_mul_i32 s{sA}, s{sHW}, {14*1024}
    s_mul_i32 s{sT}, s{sOB0}, {94*1024}
    s_add_u32 s{sW[0]}, s{sT}, s{sA}
    s_add_u32 s{sW[0]}, s{sW[0]}, {40*1024}
    s_add_u32 s{sW[1]}, s{sW[0]}, {94*1024}
    s_add_u32 s{sW[2]}, s{sW[0]}, {2*94*1024}
    s_mul_i32 s{sT}, s{sI}, {2*54*1024}
    s_add_u32 s{sT}, s{sT}, {OFF_U}
    s_add_u32 s{sT2}, s{sT}, {54*1024}
    """)
    a.srd(SRD_Z, WS, 54 * 1024, add=f"s{sT}")
    a.srd(SRD_S, WS, 54 * 1024, add=f"s{sT2}")
    for k in range(1, 4):
        a(f"""
        s_add_u32 s{sT}, s{sHW}, {k}
        s_and_b32 s{sT}, s{sT}, 3
        s_mul_i32 s{sT}, s{sT}, 18432
        s_add_u32 s{sT}, s{sT}, {GQ + (k-1)*6144}
        v_add_u32 v{81+k}, s{sT}, v{H16}
        """)
    a(f"""
    s_mul_i32 s{sT}, s{sHW}, 18432
    s_add_u32 s{sT}, s{sT}, {GQ}
    v_add_u32 v85, s{sT}, v{H16}
    v_mul_u32_u24 v86, {GRS}, v{HL}
    v_lshl_add_u32 v86, v{HH}, 3, v86
    s_lshl_b32 s{sT}, s{sHW}, 4
    s_add_u32 s{sT}, s{sT}, {GT}
    v_add_u32 v86, s{sT}, v86
    s_waitcnt vmcnt(0)
    """)
    a.log(127)
    publish(a, W_H6, sT, 8, HL, 73)
    a.stamp(6)
    a(f"s_cmp_eq_u32 s{sNBO}, 2\ns_cbranch_scc1 L_kg_g2")
    for nb in (3, 2):
        if nb == 2:
            a("L_kg_g2:")
        vq = VMQ(a)

        def wl(kp):
            if kp and kp & 3 == 0:
                for b in range(nb):
                    a(f"s_add_u32 s{sW[b]}, s{sW[b]}, 4096")
            r = 20 * (kp & 3)
            for b in range(nb):
                vq.load(f"buffer_load_dwordx4 v[{r+8+4*b}:{r+11+4*b}], v{WL}, s[{SRD_W}:{SRD_W+3}], s{sW[b]} offen offset:{1024*(kp&3)} sc1", kp)

        def ul(kp):
            if kp and kp & 3 == 0:
                a(f"s_add_u32 s{sA}, s{sA}, 4096")
            r = 20 * (kp & 3)
            for tb, srd in enumerate((SRD_Z, SRD_S)):
                vq.load(f"buffer_load_dwordx4 v[{r+4*tb}:{r+4*tb+3}], v{H16}, s[{srd}:{srd+3}], s{sA} offen offset:{1024*(kp&3)} sc1", kp)
        for kp in range(4):
            wl(kp)
        a.log(127)
        gpoll(a, 81, 72)
        a.log(127)
        vq.drained()
        if E("T3"):
            l = a.newlabel("t3")
            a(f"""
            s_lshl_b32 s{sT}, s{sJ}, 13
            v_lshlrev_b32 v80, 3, v{H16}
            s_cmp_ge_u32 s{sHW}, 2
            s_cbranch_scc1 {l}
            s_cmp_eq_u32 s{sHW}, 1
            s_cbranch_scc1 {l}_1
            buffer_load_dword v87, v80, s[{SRD_Z}:{SRD_Z+3}], s{sT} offen sc1
            s_branch {l}
            {l}_1:
            buffer_load_dword v87, v80, s[{SRD_S}:{SRD_S+3}], s{sT} offen sc1
            {l}:
            """)
        for kp in range(4):
            ul(kp)
        for kp in range(14):
            vq.need([kp])
            r = 20 * (kp & 3)
            for b in range(nb):
                for tb in range(2):
                    ac = (2 * b + tb) * 16
                    a(f"v_mfma_f32_32x32x16_bf16 a[{ac}:{ac+15}], v[{r+8+4*b}:{r+11+4*b}], v[{r+4*tb}:{r+4*tb+3}], " + (f"a[{ac}:{ac+15}]" if kp else "0"))
            if kp + 4 < 14:
                ul(kp + 4)
                wl(kp + 4)
        a.log(127)
        waitw(a, W_H5, 4, sT)
        for k in range(1, 4):
            for m in range(2 * nb):
                a(f"ds_write_b128 v{81+k}, a[{16*m+4*k}:{16*m+4*k+3}] offset:{1024*m}")
        arrive(a, W_G1)
        G = 96
        for m in range(2 * nb):
            for r in range(4):
                a(f"v_accvgpr_read_b32 v{G+4*m+r}, a{16*m+r}")
        a.log(127)
        waitw(a, W_G1, 4, sT)
        a.log(127)
        for k in range(3):
            for m in range(2 * nb):
                r = (k * 6 + m) * 4
                a(f"ds_read_b128 v[{r}:{r+3}], v85 offset:{k*6144 + 1024*m}")
        for k in range(3):
            a(f"s_waitcnt lgkmcnt({(2-k)*2*nb})")
            if k == 2:
                arrive(a, W_G2)
            for r in range(8 * nb):
                a(f"v_add_f32 v{G+r}, v{G+r}, v{24*k+r}")
        for r in range(8 * nb):
            a(f"v_mul_f32 v{r}, {f2u(-math.log2(math.e)):#x}, v{G+r}")
        for r in range(8 * nb):
            a(f"v_exp_f32 v{r}, v{r}")
        for r in range(8 * nb):
            a(f"v_add_f32 v{r}, 1.0, v{r}")
        for r in range(8 * nb):
            a(f"v_rcp_f32 v{r}, v{r}")
        for r in range(8 * nb):
            a(f"v_mul_f32 v{r}, v{r}, v{G+r}")
        for r in range(4 * nb):
            a(f"v_cvt_pk_bf16_f32 v{32+r}, v{2*r}, v{2*r+1}")
        for m in range(2 * nb):
            b, tb = m >> 1, m & 1
            a(f"ds_write_b64 v86, v[{32+2*m}:{33+2*m}] offset:{tb*32*GRS + 64*b}")
        final(a, nb, H16, sHW)


def final(a, nb, H16, sHW):
    sT, sT2 = 57, 58
    SRD_X, SRD_O = SRD_W, SRD_Z
    a(f"""
    v_mov_b32 v96, v{LN}
    s_lshl_b32 s{sT}, s{sHW}, 6
    v_add_u32 v96, s{sT}, v96
    s_mul_i32 s{sT}, s{sI}, {64*1280}
    s_lshl_b32 s{sT2}, s{sOB0}, 6
    s_add_u32 s{sT}, s{sT}, s{sT2}
    """)
    a.srd(SRD_X, X, 2048 * 1280)
    a.srd(SRD_O, OUT, 2048 * 1280)
    for k in range(nb):
        if k:
            a("v_add_u32 v96, 256, v96")
        if nb == 2:
            a("v_lshrrev_b32 v97, 3, v96\nv_and_b32 v98, 7, v96")
        else:
            a("v_mul_u32_u24 v97, 43691, v96\nv_lshrrev_b32 v97, 19, v97\nv_mul_u32_u24 v98, 12, v97\nv_sub_u32 v98, v96, v98")
        a(f"""
        v_mul_u32_u24 v99, 1280, v97
        v_lshl_add_u32 v{100+k}, v98, 4, v99
        v_mul_u32_u24 v99, {RS}, v97
        v_lshl_add_u32 v{103+k}, v98, 5, v99
        v_add_u32 v{123+k}, {2*PART}, v{103+k}
        v_mul_u32_u24 v99, {GRS}, v97
        v_lshl_add_u32 v99, v98, 4, v99
        v_add_u32 v{116+k}, {GT}, v99
        """)
        x = [44, 48, 52][k]
        a(f"buffer_load_dwordx4 v[{x}:{x+3}], v{100+k}, s[{SRD_X}:{SRD_X+3}], s{sT} offen")
    a("s_waitcnt vmcnt(0)")
    XU = [56, 64, 72]
    for k in range(nb):
        for p in range(4):
            a(f"v_lshlrev_b32 v{XU[k]+2*p}, 16, v{44+4*k+p}")
            a(f"v_and_b32 v{XU[k]+2*p+1}, s75, v{44+4*k+p}")
    a.log(127)
    a("s_waitcnt lgkmcnt(0)\ns_barrier")
    a.log(127)

    def reads(k):
        o = 0 if k != 1 else 80
        R = list(range(0, 36)) if k != 1 else list(range(80, 96)) + list(range(36, 56))
        for w in range(4):
            base = 103 + k if w < 2 else 123 + k
            for hf in range(2):
                r = R[8 * w + 4 * hf]
                a(f"ds_read_b128 v[{r}:{r+3}], v{base} offset:{SP + (w&1)*PART + 16*hf}")
        a(f"ds_read_b128 v[{R[32]}:{R[32]+3}], v{116+k}")
        return R

    def comp(k, R):
        pk = lambda op, d, x, y, z=None: a(f"v_pk_{op}_f32 v[{d}:{d+1}], v[{x}:{x+1}], v[{y}:{y+1}]" + (f", v[{z}:{z+1}]" if z is not None else ""))
        for p in range(0, 8, 2):
            pk("add", R[p], R[p], R[8 + p])
        for p in range(0, 8, 2):
            pk("add", R[16 + p], R[16 + p], R[24 + p])
        for p in range(4):
            a(f"v_lshlrev_b32 v{R[8+2*p]}, 16, v{R[32+p]}")
            a(f"v_and_b32 v{R[9+2*p]}, s75, v{R[32+p]}")
        for p in range(0, 8, 2):
            pk("add", R[p], R[p], R[16 + p])
        for p in range(0, 8, 2):
            pk("fma", R[p], R[p], R[8 + p], XU[k] + p)
        o = 106 if k != 1 else 110
        for p in range(4):
            a(f"v_cvt_pk_bf16_f32 v{o+p}, v{R[2*p]}, v{R[2*p+1]}")
        a(f"buffer_store_dwordx4 v[{o}:{o+3}], v{100+k}, s[{SRD_O}:{SRD_O+3}], s{sT} offen")

    R0 = reads(0)
    a("s_waitcnt lgkmcnt(3)")
    R1 = reads(1)
    a("s_waitcnt lgkmcnt(9)")
    comp(0, R0)
    if nb == 3:
        a("s_waitcnt lgkmcnt(0)")
        R2 = reads(2)
        comp(1, R1)
        a("s_waitcnt lgkmcnt(0)")
        comp(2, R2)
        a("s_branch L_kg_f_end")
    else:
        a("s_waitcnt lgkmcnt(0)")
        comp(1, R1)
        a("L_kg_f_end:")
        a.log(127)
        a.endpgm(1, sWV, logreg=127)


if __name__ == "__main__":
    for e in range(512):
        assert (e * 0x10000) >> 19 == e // 8
    l = gen()
    print(len(l), "lines")
```

```python
import os, math
from layout import *
from ka import X, WQ, WK, WV, WIN, WS, DBG, C_Q, C1, C2
E = os.environ.get

XR = 0
WR = 81920
SL = 18432
QX = WR + 3 * SL
VSC = 155648
STX = VSC + 2048
LN = 123
F = lambda st, kk: 24 * st + 12 * kk
XA = [48, 49, 50, 51]
WA, DV0, DV1, DVK = 52, 53, 54, 55
ACC = 64
ZP = 96
pW, pH, pT, pT2, pSW, pSo, pKo, pM, pMK, pC, pACT, pOFF, pKV, pD = 56, 57, 58, 59, 60, 61, 62, 63, 64, 65, 66, 67, 68, 69
sRHO = 81
pR, pE = 74, 39
ROT = 0 if E('P1NOROT') else 3


def phase0(a, g):
    sI, sJ, sWV, SRD_WS, SRD_W, SRD_Z, SRD_S = g.sI, g.sJ, g.sWV, g.SRD_WS, g.SRD_W, g.SRD_Z, g.SRD_S
    a(f"""
    v_mov_b32 v{LN}, v0
    v_lshrrev_b32 v1, 3, v0
    v_and_b32 v2, 7, v0
    s_lshl_b32 s{pT}, s{sWV}, 3
    v_add_u32 v3, s{pT}, v1
    v_mul_u32_u24 v124, 1280, v3
    v_lshl_add_u32 v124, v2, 4, v124
    s_mul_i32 s{pT2}, s{sI}, {64*1280}
    s_and_b32 s{pW}, s{sWV}, 3
    s_lshr_b32 s{pH}, s{sWV}, 2
    s_mov_b32 s70, 0x01050400
    s_mov_b32 s71, 0x07060302
    s_lshl_b32 s{pT}, s{sJ}, 3
    s_lshr_b64 s[70:71], s[70:71], s{pT}
    s_and_b32 s{sRHO}, s70, 0xff
    s_waitcnt lgkmcnt(0)
    """)
    a.srd(SRD_S, X, 2048 * 1280)
    for k in range(10):
        a(f"buffer_load_dwordx4 v[{80+4*k}:{83+4*k}], v124, s[{SRD_S}:{SRD_S+3}], s{pT2} offen offset:{128*k}")
    a.srd(SRD_WS, WS, WS_END)
    a(f"""
    s_mov_b32 s70, 0x0b070300
    s_mov_b32 s71, 0x1815120f
    s_lshl_b32 s{pT}, s{sRHO}, 3
    s_lshr_b64 s[70:71], s[70:71], s{pT}
    s_and_b32 s70, s70, 0xff
    s_lshl_b32 s{pT}, s70, 6
    s_add_u32 s{pT}, s{pT}, 1728
    s_mul_i32 s{pT2}, s{sJ}, 160
    s_movk_i32 s{pSW}, 3456
    s_cmp_eq_u32 s{pH}, 0
    s_cselect_b32 s{pT}, s{pT2}, s{pT}
    s_cselect_b32 s{pSW}, 1280, s{pSW}
    s_cselect_b32 s{SRD_W}, s{WQ}, s{WIN}
    s_cselect_b32 s{SRD_W+1}, s{WQ+1}, s{WIN+1}
    s_and_b32 s{pOFF}, s{pT}, 127
    s_sub_u32 s{pT}, s{pT}, s{pOFF}
    s_add_u32 s{SRD_W}, s{SRD_W}, s{pT}
    s_addc_u32 s{SRD_W+1}, s{SRD_W+1}, 0
    s_and_b32 s{SRD_W+1}, s{SRD_W+1}, 0xffff
    s_mul_i32 s{SRD_W+2}, s{pSW}, 640
    s_sub_u32 s{SRD_W+2}, s{SRD_W+2}, s{pT}
    s_mov_b32 s{SRD_W+3}, 0x20000
    {"s_mov_b32 s%d, 0" % (SRD_W+2) if E("P1NOLOAD") else ""}
    v_lshrrev_b32 v4, 4, v0
    v_and_b32 v5, 15, v0
    v_lshlrev_b32 v6, 2, v4
    v_xor_b32 v5, v5, v6
    s_lshl_b32 s{pT}, s{pW}, 3
    v_add_u32 v4, s{pT}, v4
    v_mul_lo_u32 v4, v4, s{pSW}
    v_lshl_add_u32 v125, v5, 4, v4
    s_lshl_b32 s{pT}, s{pSW}, 2
    s_sub_u32 s{pT}, s{pT}, 1024
    v_add_u32 v126, s{pT}, v125
    s_lshl_b32 s{pD}, s{pSW}, 5
    s_lshl_b32 s{pM}, s{pH}, 13
    s_lshl_b32 s{pT}, s{pW}, 11
    s_add_u32 s{pM}, s{pM}, s{pT}
    s_add_u32 s{pM}, s{pM}, {WR}
    s_and_b32 s{pR}, s{sI}, {ROT}
    s_mul_i32 s{pSo}, s{pR}, s{pD}
    s_lshl_b32 s{pSo}, s{pSo}, 2
    s_mul_i32 s{pE}, s{pD}, 20
    v_lshlrev_b32 v124, 4, v0
    s_cmp_eq_u32 s{sJ}, 0
    s_cselect_b32 s{SRD_Z}, s{WK}, s{WV}
    s_cselect_b32 s{SRD_Z+1}, s{WK+1}, s{WV+1}
    s_and_b32 s{SRD_Z+1}, s{SRD_Z+1}, 0xffff
    s_mov_b32 s{SRD_Z+2}, 25600
    s_mov_b32 s{SRD_Z+3}, 0x20000
    s_mul_i32 s{pKo}, s{pR}, 5120
    s_cmp_eq_u32 s{sWV}, 2
    s_cbranch_scc0 L_kg_nozero
    v_mov_b32 v4, 0
    v_mov_b32 v5, 0
    v_mov_b32 v6, 0
    v_mov_b32 v7, 0
    s_lshl_b32 s{pT}, s{sI}, 3
    s_add_u32 s{pT}, s{pT}, s{sJ}
    s_lshl_b32 s{pT}, s{pT}, 10
    s_add_u32 s{pT}, s{pT}, {OFF_FL}
    buffer_store_dwordx4 v[4:7], v124, s[{SRD_WS}:{SRD_WS+3}], s{pT} offen sc1
    v_lshl_add_u32 v8, v0, 2, v{g.VSY}
    ds_write_b32 v8, v4
    v_mov_b32 v8, -1
    v_mov_b32 v9, -1
    v_mov_b32 v10, -1
    v_mov_b32 v11, -1
    s_sub_u32 s{pT}, s{pT}, {OFF_FL}
    s_lshl_b32 s{pT}, s{pT}, 1
    s_add_u32 s{pT}, s{pT}, {OFF_ST2}
    buffer_store_dwordx4 v[8:11], v124, s[{SRD_WS}:{SRD_WS+3}], s{pT} offen sc1
    buffer_store_dwordx4 v[8:11], v124, s[{SRD_WS}:{SRD_WS+3}], s{pT} offen offset:1024 sc1
    L_kg_nozero:
    """)
    a(f"""
    v_lshrrev_b32 v4, 1, v3
    v_and_b32 v4, 7, v4
    v_xor_b32 v4, v4, v2
    v_lshlrev_b32 v4, 4, v4
    v_lshl_add_u32 v121, v3, 7, v4
    v_add_u32 v122, 40960, v121
    s_mov_b32 s75, 0xffff0000
    """)
    a.log(127)
    A = [0, 0, 0, 0]
    for k in range(10):
        KD = int(E("KD0", "7"))
        a(f"s_waitcnt vmcnt({9 - k + (6 if k > KD else 0)})")
        for p in range(4):
            a(f"v_lshlrev_b32 v{8*k+2*p}, 16, v{80+4*k+p}")
            a(f"v_and_b32 v{8*k+2*p+1}, s75, v{80+4*k+p}")
        if k == KD:
            for st in range(3):
                for x in dmaA(g, st, 125, 126):
                    a(x)
            a(f"s_cmp_eq_u32 s{sWV}, 3\ns_cbranch_scc0 L_kg_nok\ns_cmp_lt_u32 s{sJ}, 2\ns_cbranch_scc0 L_kg_nok")
            for st in range(3):
                for x in dmaK(g, st, 124):
                    a(x)
            a("L_kg_nok:")
        for p in range(4):
            u = 8 * k + 2 * p
            s_, q_ = 80 + 2 * (p & 1), 84 + 2 * (p & 1)
            if k == 0:
                continue
            if k == 1:
                u0 = 2 * p
                if p < 2:
                    a(f"v_pk_add_f32 v[{s_}:{s_+1}], v[{u0}:{u0+1}], v[{u}:{u+1}]")
                    a(f"v_pk_mul_f32 v[{q_}:{q_+1}], v[{u0}:{u0+1}], v[{u0}:{u0+1}]")
                else:
                    a(f"v_pk_add_f32 v[{s_}:{s_+1}], v[{s_}:{s_+1}], v[{u0}:{u0+1}]")
                    a(f"v_pk_fma_f32 v[{q_}:{q_+1}], v[{u0}:{u0+1}], v[{u0}:{u0+1}], v[{q_}:{q_+1}]")
                    a(f"v_pk_add_f32 v[{s_}:{s_+1}], v[{s_}:{s_+1}], v[{u}:{u+1}]")
                a(f"v_pk_fma_f32 v[{q_}:{q_+1}], v[{u}:{u+1}], v[{u}:{u+1}], v[{q_}:{q_+1}]")
            else:
                a(f"v_pk_add_f32 v[{s_}:{s_+1}], v[{s_}:{s_+1}], v[{u}:{u+1}]")
                a(f"v_pk_fma_f32 v[{q_}:{q_+1}], v[{u}:{u+1}], v[{u}:{u+1}], v[{q_}:{q_+1}]")
    a.log(127)
    a("""
    v_pk_add_f32 v[80:81], v[80:81], v[82:83]
    v_pk_add_f32 v[84:85], v[84:85], v[86:87]
    v_add_f32 v80, v80, v81
    v_add_f32 v84, v84, v85
    """)
    for sel in ("quad_perm:[1,0,3,2]", "quad_perm:[2,3,0,1]", "row_half_mirror"):
        for r in (80, 84):
            a(f"v_add_f32_dpp v{r}, v{r}, v{r} {sel} row_mask:0xf bank_mask:0xf")
    a(f"""
    v_mul_f32 v80, {f2u(1/640):#x}, v80
    v_mul_f32 v84, {f2u(1/640):#x}, v84
    v_fma_f32 v84, -v80, v80, v84
    v_max_f32 v84, 0, v84
    v_cvt_pk_bf16_f32 v84, v84, v80
    v_and_b32 v81, s75, v84
    v_lshlrev_b32 v84, 16, v84
    v_add_f32 v84, {f2u(1e-5):#x}, v84
    v_cvt_pk_bf16_f32 v84, v84, v84
    v_lshlrev_b32 v84, 16, v84
    v_sqrt_f32 v84, v84
    v_cvt_pk_bf16_f32 v84, v84, v84
    v_lshlrev_b32 v84, 16, v84
    v_rcp_f32 v80, v84
    v_mul_f32 v81, -v81, v80
    """)
    for k in range(10):
        for p in range(4):
            u = 8 * k + 2 * p
            a(f"v_pk_fma_f32 v[{u}:{u+1}], v[{u}:{u+1}], v[80:81], v[80:81] op_sel:[0,0,1] op_sel_hi:[1,0,1]")
        o = 84 + 4 * (k % 8)
        for p in range(4):
            a(f"v_cvt_pk_bf16_f32 v{o+p}, v{8*k+2*p}, v{8*k+2*p+1}")
        a(f"ds_write_b128 v{121 + k // 5}, v[{o}:{o+3}] offset:{XR + 8192 * (k % 5)}")
    a(f"""
    v_mov_b32 v{DV0}, v125
    v_mov_b32 v{DV1}, v126
    v_mov_b32 v{DVK}, v124
    v_lshrrev_b32 v56, 5, v{LN}
    v_and_b32 v57, 31, v{LN}
    v_bfe_u32 v58, v{LN}, 1, 3
    v_xor_b32 v58, v58, v56
    v_lshlrev_b32 v58, 4, v58
    v_lshl_add_u32 v{XA[0]}, v57, 7, v58
    s_lshl_b32 s{pT}, s{pR}, 14
    v_add_u32 v{XA[0]}, s{pT}, v{XA[0]}
    v_xor_b32 v{XA[1]}, 32, v{XA[0]}
    v_xor_b32 v{XA[2]}, 64, v{XA[0]}
    v_xor_b32 v{XA[3]}, 96, v{XA[0]}
    v_bfe_u32 v58, v{LN}, 2, 2
    v_lshl_add_u32 v59, v56, 3, v58
    v_bfe_u32 v60, v{LN}, 4, 1
    v_and_b32 v61, 3, v{LN}
    v_lshl_add_u32 v60, v60, 2, v61
    s_mov_b32 s{pC}, 0
    """)


def dmaA(g, slot, d0=DV0, d1=DV1):
    wrap = [f"s_cmp_eq_u32 s{pSo}, s{pE}", f"s_cselect_b32 s{pSo}, 0, s{pSo}"] if slot == 3 and ROT else []
    return [f"s_add_u32 m0, s{pM}, {slot*SL}",
            f"buffer_load_dwordx4 v{d0}, s[{g.SRD_W}:{g.SRD_W+3}], s{pSo} offen lds",
            f"buffer_load_dwordx4 v{d1}, s[{g.SRD_W}:{g.SRD_W+3}], s{pSo} offen offset:1024 lds",
            f"s_add_u32 s{pSo}, s{pSo}, s{pD}"] + wrap


def dmaK(g, slot, dk=DVK):
    wrap = [f"s_cmp_eq_u32 s{pKo}, 25600", f"s_cselect_b32 s{pKo}, 0, s{pKo}"] if slot == 3 and ROT else []
    return [f"s_mov_b32 m0, {WR + 16384 + slot*SL}",
            f"buffer_load_dwordx4 v{dk}, s[{g.SRD_Z}:{g.SRD_Z+3}], s{pKo} offen lds",
            f"buffer_load_dwordx4 v{dk}, s[{g.SRD_Z}:{g.SRD_Z+3}], s{pKo} offen offset:1024 lds",
            f"s_add_u32 s{pKo}, s{pKo}, 1280"] + wrap


def mfmas(st, first=False):
    out = []
    for kk in range(2):
        f = F(st, kk)
        for rb in range(2):
            c = ACC + 16 * rb
            out.append(f"v_mfma_f32_32x32x16_bf16 v[{c}:{c+15}], v[{f}:{f+3}], v[{f+4+4*rb}:{f+7+4*rb}], v[{c}:{c+15}]")
    return out


def reads(st, woff, kstr, rstr, kp0, xoff):
    out = []
    for kk in range(2):
        f = F(st, kk)
        out += [f"ds_read_b64_tr_b16 v[{f}:{f+1}], v{WA} offset:{woff + kk*kstr}",
                f"ds_read_b64_tr_b16 v[{f+2}:{f+3}], v{WA} offset:{woff + kk*kstr + rstr}",
                f"ds_read_b128 v[{f+4}:{f+7}], v{XA[kp0+kk]} offset:{XR + xoff}",
                f"ds_read_b128 v[{f+8}:{f+11}], v{XA[kp0+kk]} offset:{XR + xoff + 4096}"]
    return out


def zero_pipe(a):
    for r in range(24, 48):
        a(f"v_mov_b32 v{r}, 0")
    for rb in range(2):
        c = ACC + 16 * rb
        a(f"v_mfma_f32_32x32x16_bf16 v[{c}:{c+15}], v[24:27], v[24:27], 0")


def spread(mf, fill):
    out, k = [], 0
    for m in range(len(mf)):
        out.append(mf[m])
        e = (len(fill) * (m + 1) + len(mf) - 1) // len(mf)
        out += fill[k:e]
        k = e
    return out


def passA(a, g, tag, kstr, rstr):
    for act in ((1,) if tag == "q" else (1, 0)):
        kv = tag == "k" and act
        lab = f"L_kg_A{tag}{act}"
        if act and tag != "q":
            a(f"s_cmp_eq_u32 s{pACT}, 0\ns_cbranch_scc1 L_kg_A{tag}0")
        a(f"{lab}:")
        for s in range(4):
            if E("LOGA"): a.log(127)
            a(f"s_waitcnt vmcnt({8 if kv else 4}) lgkmcnt(0)")
            if E("LOGA"): a.log(127)
            a("s_barrier")
            if E("LOGA"): a.log(127)
            rd, mf = reads(s & 1, s * SL, kstr, rstr, 2 * (s & 1), (s >> 1) * 8192), mfmas((s & 1) ^ 1)
            dm = dmaA(g, (s + 3) & 3) + (dmaK(g, (s + 3) & 3) if kv else [])
            ex = []
            if s == 0:
                ex = [f"s_cmp_ge_u32 s{pC}, 4", f"s_cselect_b32 s{g.SRD_W+2}, 0, s{g.SRD_W+2}"] + ([f"s_cselect_b32 s{g.SRD_Z+2}, 0, s{g.SRD_Z+2}"] if kv else [])
            if s == 2:
                ex = [f"s_add_u32 s{pT}, s{pC}, s{pR}", f"s_cmp_eq_u32 s{pT}, 4", f"s_movk_i32 s{pT}, 16384",
                      f"s_cselect_b32 s{pT}, {-65536 & 0xffffffff}, s{pT}", f"s_add_u32 s{pC}, s{pC}, 1"]
                if act:
                    ex += [f"v_add_u32 v{r}, s{pT}, v{r}" for r in XA[:2]]
            if s == 3:
                ex = ([f"v_add_u32 v{r}, s{pT}, v{r}" for r in XA[2:]] if act else []) + [f"s_cmp_lt_u32 s{pC}, 5"]
            if not act:
                seq = dm + ex
            elif E("AORD", "m") == "s" and tag == "z":
                seq = mf + rd + dm + ex
            elif E("AORD", "m") == "s":
                seq = rd + dm + mf + ex
            elif E("AORD", "m") == "m" and tag == "z":
                sx = [x for x in ex if not x.startswith("v_")]
                vx = [x for x in ex if x.startswith("v_")]
                lp = [x for x in sx if "s_cmp_lt" in x]
                sx = [x for x in sx if x not in lp]
                seq = dm + sx + rd[:4] + [mf[0]] + rd[4:6] + [mf[1]] + rd[6:8] + [mf[2]] + vx + lp + [mf[3]]
            elif E("AORD", "m") == "m":
                seq = [mf[0]] + rd[0:3] + [mf[1]] + rd[3:6] + [mf[2]] + rd[6:8] + [mf[3]] + dm + ex
            elif E("AORD", "m") == "j":
                seq = spread(mf, dm + rd + ex)
            else:
                seq = spread(mf, rd + dm + ex)
            for x in seq:
                a(x)
        a(f"s_cbranch_scc1 {lab}")
        if act and tag != "q":
            a(f"s_branch L_kg_A{tag}e")
    a(f"L_kg_A{tag}e:")
    a("s_waitcnt vmcnt(0) lgkmcnt(0)\ns_barrier")
    for m in mfmas(1):
        a(m)


def gelu(a):
    a(f"v_mov_b32 v62, {f2u(C2):#x}")
    for r in range(32):
        a(f"v_mul_f32 v{r}, v{ACC+r}, v{ACC+r}")
    for r in range(32):
        a(f"v_fmaak_f32 v{r}, v{r}, v62, {f2u(C1):#x}")
    for r in range(32):
        a(f"v_mul_f32 v{r}, v{r}, v{ACC+r}")
    for r in range(32):
        a(f"v_exp_f32 v{r}, v{r}")
    for r in range(32):
        a(f"v_add_f32 v{r}, 1.0, v{r}")
    for r in range(32):
        a(f"v_rcp_f32 v{r}, v{r}")
    for r in range(32):
        a(f"v_mul_f32 v{ACC+r}, v{r}, v{ACC+r}")


def gelu_pk(a):
    a(f"v_mov_b32 v62, {f2u(C1):#x}\nv_mov_b32 v63, {f2u(C2):#x}\nv_mov_b32 v32, 1.0")
    P = lambda r: f"v[{r}:{r+1}]"
    for r in range(0, 32, 2):
        a(f"v_pk_mul_f32 {P(r)}, {P(ACC+r)}, {P(ACC+r)}")
    for r in range(0, 32, 2):
        a(f"v_pk_fma_f32 {P(r)}, {P(r)}, v[62:63], v[62:63] op_sel:[0,1,0] op_sel_hi:[1,1,0]")
    for r in range(0, 32, 2):
        a(f"v_pk_mul_f32 {P(r)}, {P(r)}, {P(ACC+r)}")
    for r in range(32):
        a(f"v_exp_f32 v{r}, v{r}")
    for r in range(0, 32, 2):
        a(f"v_pk_add_f32 {P(r)}, {P(r)}, v[32:33] op_sel_hi:[1,0]")
    for r in range(32):
        a(f"v_rcp_f32 v{r}, v{r}")
    for r in range(0, 32, 2):
        a(f"v_pk_mul_f32 {P(ACC+r)}, {P(r)}, {P(ACC+r)}")


def dbg_check_issue(a, g, word0, vdst):
    a.srd(g.SRD_S, DBG, 256)
    a(f"""
    v_and_b32 v{g.VT0}, 3, v{LN}
    v_bfe_u32 v{g.VT1}, v{LN}, 2, 1
    v_lshl_add_u32 v{g.VT0}, v{g.VT1}, 5, v{g.VT0}
    v_lshlrev_b32 v{vdst+1}, 2, v{g.VT0}
    buffer_load_dword v{vdst}, v{vdst+1}, s[{g.SRD_S}:{g.SRD_S+3}], 0 offen offset:{4*word0} sc1
    """)


def dbg_check_wait(a, g, word0, vdst):
    l = a.newlabel("d")
    a(f"""
    s_mov_b32 s{g.SPIN}, 0x40000
    {l}:
    s_waitcnt vmcnt(0)
    v_cmp_ne_u32 vcc, 32, v{vdst}
    s_nop 4
    s_cbranch_vccz {l}_d
    s_sleep 3
    buffer_load_dword v{vdst}, v{vdst+1}, s[{g.SRD_S}:{g.SRD_S+3}], 0 offen offset:{4*word0} sc1
    s_sub_u32 s{g.SPIN}, s{g.SPIN}, 1
    s_cbranch_scc0 {l}
    {l}_d:
    """)


def dbg_add(a, g, word0, sT):
    a.srd(g.SRD_S, DBG, 256)
    a(f"""
    s_and_b32 s{sT}, s2, 3
    s_bfe_u32 s{sT+1}, s2, 0x10002
    s_lshl_b32 s{sT+1}, s{sT+1}, 5
    s_add_u32 s{sT}, s{sT}, s{sT+1}
    s_lshl_b32 s{sT}, s{sT}, 2
    s_mov_b64 exec, 1
    v_mov_b32 v{g.VT0}, 0
    v_mov_b32 v{g.VT1}, 1
    buffer_atomic_add v{g.VT1}, v{g.VT0}, s[{g.SRD_S}:{g.SRD_S+3}], s{sT} offen offset:{4*word0} sc1
    s_mov_b64 exec, -1
    """)


def flag_wait(a, g, vdst, voff, soff, target=1):
    l = a.newlabel("f")
    ws = f"s[{g.SRD_WS}:{g.SRD_WS+3}]"
    a(f"""
    s_mov_b32 s{g.SPIN}, 0x40000
    {l}:
    s_waitcnt vmcnt(0)
    v_cmp_gt_u32 vcc, {target}, v{vdst}
    s_nop 4
    s_cbranch_vccz {l}_d
    s_sleep 3
    buffer_load_dword v{vdst}, v{voff}, {ws}, s{soff} offen sc1
    s_sub_u32 s{g.SPIN}, s{g.SPIN}, 1
    s_cbranch_scc0 {l}
    {l}_d:
    """)


def att_phase1(a, g):
    sI, sJ, sWV, SRD_WS, SRD_W = g.sI, g.sJ, g.sWV, g.SRD_WS, g.SRD_W
    ws = f"s[{SRD_WS}:{SRD_WS+3}]"
    zero_pipe(a)
    a(f"""
    s_cmp_eq_u32 s{sWV}, 2
    s_cbranch_scc0 L_kg_a_nz
    s_waitcnt vmcnt(0)
    """)
    dbg_add(a, g, 0, pT)
    a(f"""
    L_kg_a_nz:
    s_mov_b32 s{pACT}, 1
    s_cmp_eq_u32 s{sWV}, 3
    s_cbranch_scc1 L_kg_a_kv
    v_lshrrev_b32 v61, 1, v60
    v_mul_u32_u24 v62, 40, v61
    v_add_u32 v62, 32, v62
    v_lshrrev_b32 v61, 2, v60
    v_mul_u32_u24 v61, 40, v61
    v_and_b32 v63, 3, v60
    v_lshl_add_u32 v61, v63, 3, v61
    s_mul_i32 s{pT}, s{sWV}, 80
    v_add_u32 v61, s{pT}, v61
    s_cmp_eq_u32 s{sWV}, 2
    s_cselect_b64 s[70:71], -1, 0
    v_cndmask_b32 v61, v61, v62, s[70:71]
    v_add_u32 v61, s{pOFF}, v61
    v_lshlrev_b32 v62, 6, v58
    v_xor_b32 v61, v61, v62
    v_lshl_add_u32 v{WA}, v59, 8, v61
    v_add_u32 v{WA}, {WR}, v{WA}
    """)
    a.log(127)
    passA(a, g, "q", 4096, 1024)
    a.log(127)
    passB_loader_setup(a, g)
    a(f"""
    v_lshlrev_b32 v62, 3, v{LN}
    s_mul_i32 s{pT}, s{sWV}, 2560
    s_add_u32 s{pT}, s{pT}, {QX}
    v_add_u32 v63, s{pT}, v62
    v_add_u32 v62, {QX + 1024}, v62
    """)
    for r in range(32):
        a(f"v_mul_f32 v{ACC+r}, {f2u(C_Q):#x}, v{ACC+r}")
    for r in range(16):
        a(f"v_cvt_pk_bf16_f32 v{r}, v{ACC+2*r}, v{ACC+2*r+1}")
    a(f"s_cmp_eq_u32 s{sWV}, 2\ns_cbranch_scc1 L_kg_a_q2")
    for qb in range(2):
        for q in range(4):
            a(f"ds_write_b64 v63, v[{8*qb+2*q}:{8*qb+2*q+1}] offset:{qb*5120 + (q>>1)*1280 + (q&1)*512}")
    a("L_kg_a_plain:")
    passB_loader(a, g, lambda S: None)
    a("s_branch L_kg_a_done")
    a("L_kg_a_q2:\ns_mov_b32 exec_hi, 0")
    for qb in range(2):
        for q in range(4):
            a(f"ds_write_b64 v62, v[{8*qb+2*q}:{8*qb+2*q+1}] offset:{qb*5120 + q*1280}")
    a(f"""
    s_mov_b32 exec_hi, -1
    v_mov_b32 v41, 0
    s_lshr_b32 s{pKo}, s{sI}, 2
    s_lshl_b32 s{pKo}, s{pKo}, 15
    s_add_u32 s{pKo}, s{pKo}, {OFF_FL}
    """)

    def act2(S):
        if S == int(E("FKS", "6")):
            a(f"buffer_load_dword v40, v41, {ws}, s{pKo} offen sc1")
        if S == 7:
            a.log(127)
            flag_wait(a, g, 40, 41, pKo, 64)
            a.log(127)
    passB_loader(a, g, act2)
    a("s_branch L_kg_a_done")
    a(f"""
    L_kg_a_kv:
    s_cmp_lt_u32 s{sJ}, 2
    s_cselect_b32 s{pACT}, 1, 0
    v_mul_u32_u24 v61, 40, v59
    v_lshl_add_u32 v61, v60, 3, v61
    v_add_u32 v{WA}, {WR + 16384}, v61
    s_waitcnt vmcnt(0)
    """)
    a.log(127)
    passA(a, g, "k", 640, 160)
    a.log(127)
    passB_loader_setup(a, g)
    a(f"""
    s_cmp_eq_u32 s{pACT}, 0
    s_cbranch_scc1 L_kg_a_plain
    """)
    dbg_check_issue(a, g, 0, 40)
    for r in range(16):
        a(f"v_cvt_pk_bf16_f32 v{r}, v{ACC+2*r}, v{ACC+2*r+1}")
    a(f"""
    v_lshlrev_b32 v62, 4, v{LN}
    v_lshlrev_b32 v63, 3, v{LN}
    s_mul_i32 s{pT}, s{sI}, {2*KV_REC}
    s_add_u32 s{pT}, s{pT}, {OFF_KV}
    s_add_u32 s{pT2}, s{pT}, {KV_REC}
    s_mov_b32 s72, 0x3f803f80
    s_cmp_eq_u32 s{sJ}, 0
    s_cbranch_scc0 L_kg_a_v
    s_mov_b32 exec_lo, 0
    v_mov_b32 v4, s72
    v_mov_b32 v5, 0x3f80
    v_mov_b32 v12, s72
    v_mov_b32 v13, 0x3f80
    s_mov_b32 exec_lo, -1
    buffer_store_dwordx4 v[0:3], v62, {ws}, s{pT} offen sc1
    buffer_store_dwordx2 v[4:5], v63, {ws}, s{pT} offen offset:3072 sc1
    buffer_store_dwordx4 v[8:11], v62, {ws}, s{pT2} offen sc1
    buffer_store_dwordx2 v[12:13], v63, {ws}, s{pT2} offen offset:3072 sc1
    s_branch L_kg_a_kvs
    L_kg_a_v:
    v_lshlrev_b32 v32, 6, v57
    v_lshl_add_u32 v32, v56, 3, v32
    v_add_u32 v32, {VSC}, v32
    v_lshl_add_u32 v33, v56, 2, v58
    v_lshlrev_b32 v33, 6, v33
    v_lshl_add_u32 v33, v60, 3, v33
    v_add_u32 v33, {VSC}, v33
    """)
    for rb in range(2):
        for q in range(4):
            a(f"ds_write_b64 v32, v[{8*rb+2*q}:{8*rb+2*q+1}] offset:{16*q}")
        a("s_waitcnt lgkmcnt(0)")
        for q in range(4):
            a(f"ds_read_b64_tr_b16 v[{16+8*rb+2*q}:{17+8*rb+2*q}], v33 offset:{512*q}")
        a("s_waitcnt lgkmcnt(0)")
    a("s_mov_b32 exec_lo, 0x100000\ns_mov_b32 exec_hi, 0x100000")
    for r in range(16):
        a(f"v_mov_b32 v{16+r}, s72")
    a("s_mov_b32 exec_lo, 0xffe00000\ns_mov_b32 exec_hi, 0xffe00000")
    for r in range(16):
        a(f"v_mov_b32 v{16+r}, 0")
    a(f"""
    s_mov_b64 exec, -1
    buffer_store_dwordx4 v[16:19], v62, {ws}, s{pT} offen offset:1024 sc1
    buffer_store_dwordx4 v[20:23], v62, {ws}, s{pT} offen offset:2048 sc1
    buffer_store_dwordx4 v[24:27], v62, {ws}, s{pT2} offen offset:1024 sc1
    buffer_store_dwordx4 v[28:31], v62, {ws}, s{pT2} offen offset:2048 sc1
    L_kg_a_kvs:
    """)
    a.log(127)
    a(f"""
    v_lshlrev_b32 v62, 15, v{LN}
    v_mov_b32 v63, 1
    s_mov_b32 s{pKo}, {OFF_FL}
    """)

    def act3(S):
        if S == 0:
            a.log(127)
            dbg_check_wait(a, g, 0, 40)
            a.log(127)
            a(f"s_mov_b64 exec, 0xff\nbuffer_atomic_add v63, v62, {ws}, s{pKo} offen sc1\ns_mov_b64 exec, -1")
    passB_loader(a, g, act3)
    a("L_kg_a_done:")


def passB_loader_setup(a, g):
    a(f"""
    s_lshl_b32 s{pT}, s{g.sFB0}, 6
    s_and_b32 s{pT}, s{pT}, 0xffffff80
    s_sub_u32 s{pT2}, {640*3456}, s{pT}
    """)
    a.srd(g.SRD_W, WIN, f"s{pT2}" if not E("P1NOLOAD") else 0, add=f"s{pT}")
    a(f"""
    v_lshrrev_b32 v61, 4, v{LN}
    v_and_b32 v62, 15, v{LN}
    v_lshlrev_b32 v63, 2, v61
    v_xor_b32 v62, v62, v63
    s_lshl_b32 s{pT}, s{g.sWV}, 4
    v_add_u32 v61, s{pT}, v61
    v_mul_u32_u24 v61, 3456, v61
    v_lshl_add_u32 v48, v62, 4, v61
    v_add_u32 v49, {4*3456 - 1024}, v48
    v_add_u32 v50, {2*(4*3456 - 1024)}, v48
    v_add_u32 v51, {3*(4*3456 - 1024)}, v48
    s_lshl_b32 s{pM}, s{g.sWV}, 12
    s_add_u32 s{pM}, s{pM}, {WR}
    s_mul_i32 s{pSo}, s{pR}, {128*3456}
    """)
    issueB(a, g, 0)
    issueB(a, g, 1)


def issueB(a, g, S):
    a(f"s_add_u32 m0, s{pM}, {(S % 3) * SL}")
    a("s_nop 0")
    for p in range(4):
        a(f"buffer_load_dwordx4 v{48+p}, s[{g.SRD_W}:{g.SRD_W+3}], s{pSo} offen offset:{1024*p} lds")
    a(f"s_add_u32 s{pSo}, s{pSo}, {64*3456}")
    if S & 1:
        a(f"s_cmp_eq_u32 s{pSo}, {640*3456}\ns_cselect_b32 s{pSo}, 0, s{pSo}")


def passB_loader(a, g, action):
    for S in range(8):
        if E("LOGB2"): a.log(127)
        a("s_waitcnt vmcnt(4) lgkmcnt(0)")
        if E("LOGB2"): a.log(127)
        a("s_barrier")
        action(S)
        issueB(a, g, S + 2)


def hlp_phase1(a, g):
    sI, sJ, SRD_WS = g.sI, g.sJ, g.SRD_WS
    ws = f"s[{SRD_WS}:{SRD_WS+3}]"
    zero_pipe(a)
    a(f"""
    s_sub_u32 s{pT}, s{sRHO}, 1
    s_cmp_lt_u32 s{pT}, 3
    s_cselect_b32 s{pT}, 4, 3
    s_cmp_lt_u32 s{pW}, s{pT}
    s_cselect_b32 s{pACT}, 1, 0
    s_lshl_b32 s{pT}, s{pW}, 6
    s_add_u32 s{pT}, s{pT}, s{pOFF}
    v_lshl_add_u32 v61, v60, 3, s{pT}
    v_lshlrev_b32 v62, 6, v58
    v_xor_b32 v61, v61, v62
    v_lshl_add_u32 v{WA}, v59, 8, v61
    v_add_u32 v{WA}, {WR + 8192}, v{WA}
    """)
    a.log(127)
    passA(a, g, "z", 4096, 1024)
    a.log(127)
    dbg_check_issue(a, g, 0, 116)
    a("s_mov_b32 s79, s70")
    gelu_pk(a)
    for rb in range(2):
        c = ACC + 16 * rb
        a(f"v_pk_add_f32 v[{4+4*rb}:{5+4*rb}], v[{c}:{c+1}], v[{c+2}:{c+3}]")
        a(f"v_pk_mul_f32 v[{6+4*rb}:{7+4*rb}], v[{c}:{c+1}], v[{c}:{c+1}]")
    for r in range(2, 16, 2):
        for rb in range(2):
            c = ACC + 16 * rb
            if r > 2:
                a(f"v_pk_add_f32 v[{4+4*rb}:{5+4*rb}], v[{4+4*rb}:{5+4*rb}], v[{c+r}:{c+r+1}]")
            a(f"v_pk_fma_f32 v[{6+4*rb}:{7+4*rb}], v[{c+r}:{c+r+1}], v[{c+r}:{c+r+1}], v[{6+4*rb}:{7+4*rb}]")
    a("v_add_f32 v0, v4, v5\nv_add_f32 v1, v6, v7\nv_add_f32 v2, v8, v9\nv_add_f32 v3, v10, v11")
    a(f"""
    v_permlane32_swap_b32 v0, v2
    v_permlane32_swap_b32 v1, v3
    v_add_f32 v0, v0, v2
    v_add_f32 v1, v1, v3
    s_lshl_b32 s{pT}, s{sI}, 3
    s_add_u32 s{pT}, s{pT}, s{sJ}
    s_lshl_b32 s{pT}, s{pT}, 2
    s_add_u32 s{pT}, s{pT}, s{pW}
    s_lshl_b32 s{pT}, s{pT}, 9
    s_add_u32 s{pT}, s{pT}, {OFF_ST2}
    v_lshlrev_b32 v118, 3, v{LN}
    buffer_store_dwordx2 v[0:1], v118, {ws}, s{pT} offen sc1
    """)
    pack = [f"v_cvt_pk_bf16_f32 v{ZP+r}, v{ACC+2*r}, v{ACC+2*r+1}" for r in range(16)]
    a(f"""
    s_mov_b32 s78, s{pACT}
    s_cmp_lt_u32 s{pW}, s{g.sNB}
    s_cselect_b32 s{pACT}, 1, 0
    s_lshl_b32 s{pT}, s{g.sFB0}, 6
    s_and_b32 s{pT}, s{pT}, 64
    s_lshl_b32 s{pT2}, s{pW}, 6
    s_add_u32 s{pT}, s{pT}, s{pT2}
    v_lshl_add_u32 v61, v60, 3, s{pT}
    v_lshlrev_b32 v62, 6, v58
    v_xor_b32 v61, v61, v62
    v_lshl_add_u32 v{WA}, v59, 8, v61
    v_add_u32 v{WA}, {WR}, v{WA}
    s_movk_i32 s{pM}, 16384
    """)
    toa = lambda l: [x.replace(" v[", " a[", 1) for x in l]

    def mfB(st):
        out = []
        for kk in range(2):
            f = F(st, kk)
            for rb in range(2):
                c = ACC + 16 * rb
                out.append(f"v_mfma_f32_32x32x16_bf16 v[{c}:{c+15}], a[{f}:{f+3}], a[{f+4+4*rb}:{f+7+4*rb}], v[{c}:{c+15}]")
        return out
    a.log(127)
    def part_loads():
        for k in range(8):
            a(f"buffer_load_dwordx2 v[{32+2*k}:{33+2*k}], v118, {ws}, s{pD} offen offset:{512*k} sc1")

    def action(S):
        if S == 2:
            dbg_check_wait(a, g, 0, 116)
        if S == int(E("FSS", "7")):
            part_loads()

    a(f"""
    s_lshl_b32 s{pD}, s{sI}, 2
    s_add_u32 s{pD}, s{pD}, s{pW}
    s_lshl_b32 s{pD}, s{pD}, 12
    s_add_u32 s{pD}, s{pD}, {OFF_ST2}
    s_cmp_eq_u32 s{pACT}, 0
    s_cbranch_scc1 L_kg_B_idle
    """)
    for S in range(10):
        if E("LOGB"): a.log(127)
        a("s_waitcnt lgkmcnt(0)\ns_barrier")
        if E("LOGB"): a.log(127)
        so, xo, p = (S % 3) * SL, (S & 1) * 8192, S & 1
        rd = toa(reads(2 * p, so, 4096, 1024, 0, xo)) + toa(reads(2 * p + 1, so + 8192, 4096, 1024, 2, xo))
        mf = mfB(2 * (p ^ 1)) + mfB(2 * (p ^ 1) + 1)
        k = 0
        for m in range(8):
            if S:
                a(mf[m] if S > 1 or m > 1 else mf[m][:mf[m].rindex(",")] + ", 0")
            e = min(16, 3 * (m + 1))
            for x in rd[k:e]:
                a(x)
            k = e
            if p and S < 9:
                if m == 5:
                    a(f"s_cmp_eq_u32 s{pR}, {4 - (S >> 1)}\ns_cselect_b32 s{pT2}, {-65536 & 0xffffffff}, s{pM}")
                if m == 6:
                    for r in XA:
                        a(f"v_add_u32 v{r}, s{pT2}, v{r}")
        if S == 0:
            for x in pack:
                a(x)
        action(S)
    a("s_branch L_kg_B_end\nL_kg_B_idle:")
    for x in pack:
        a(x)
    for S in range(10):
        a("s_barrier")
        action(S)
    a(f"""
    L_kg_B_end:
    s_lshl_b32 s{pT}, s{pW}, 9
    s_add_u32 s{pT}, s{pT}, {STX}
    v_add_u32 v5, s{pT}, v118
    v_add_u32 v6, {STX}, v118
    s_mov_b32 s{g.SPIN}, 0x40000
    L_kg_B_chk:
    s_waitcnt vmcnt(0)
    v_max_u32 v8, v33, v35
    v_max3_u32 v8, v8, v37, v39
    v_max3_u32 v8, v8, v41, v43
    v_max3_u32 v8, v8, v45, v47
    v_cmp_eq_u32 vcc, -1, v8
    s_nop 4
    s_cbranch_vccz L_kg_B_ok
    """)
    part_loads()
    a(f"""
    s_sub_u32 s{g.SPIN}, s{g.SPIN}, 1
    s_cbranch_scc0 L_kg_B_chk
    L_kg_B_ok:
    """)
    for k in range(1, 8):
        a(f"v_add_f32 v32, v32, v{32+2*k}")
        a(f"v_add_f32 v33, v33, v{33+2*k}")
    a("ds_write_b64 v5, v[32:33]")
    a("s_waitcnt lgkmcnt(0)\ns_barrier")
    for m in mfB(2) + mfB(3):
        a(m)
    a.log(127)
```

```python
import sys, os
sys.path.insert(0, os.path.dirname(__file__))
import ka, kb, kc, kf, kg
from asmlib import kernel_text, kd_text
NAME = "recurrent_scan__grouped_kv_mqa__mixer_gmlp__prompt"
ref = open(f"cdna_kernels/{NAME}.s.ref").read().split("\n")
head = [l for l in ref if l.startswith(";") and "@launch" not in l and "Override launch" not in l and "grid=ceil" not in l]
def build(extra_pre=0, extra_post=0):
    ks = [("ka_kernel", ka.gen(), 208, 208, (ka.NWG_A, 512, ka.LDS_A)),
          ("kb_kernel", kb.gen(), 256, 128, (256, 512, kb.LDS_B)),
          ("kc_kernel", kc.gen(), 224, 128, (256, 256, kc.LDS_C))]
    if not os.environ.get("NOFUSE"):
        ks = ks[:1] + [("kf_kernel", kf.gen(), 256, 128, (256, 512, kf.LDS_F))]
    if not os.environ.get("NOFUSE") and not os.environ.get("TWO"):
        ks = [("kg_kernel", kg.gen(), 256, 128, (256, 512, kg.LDS_F))]
    if os.environ.get("KD"):
        import kd
        ks.append(("kd_kernel", kd.gen(int(os.environ["KD"])), 8, 8, (1, 256, 0)))
    if os.environ.get("KD2"):
        import kd2
        ks.append(("kd_kernel", kd2.gen(os.environ["KD2"]), 8, 8, (1, 64, 0)))
    out = list(head)
    L = [f"; @launch kernel={n} grid=({g},1,1) block=({b},1,1) lds={lds}" for n, _, _, _, (g, b, lds) in ks]
    if len(ks) == 1 and not extra_pre and not extra_post and not os.environ.get("ASLIST"):
        n, l, nv, acc, (g, b, lds) = ks[0]
        ks = [(NAME + "_kernel", l, nv, acc, (g, b, lds))]
        L = [f"; @launch grid=({g},1,1) block=({b},1,1) lds={lds}"]
    E = "; @launch kernel=nop_kernel grid=(256,1,1) block=(256,1,1) lds=0"
    out += [E] * extra_pre + L + [E] * extra_post
    out.append('.amdgcn_target "amdgcn-amd-amdhsa--gfx950"')
    out.append(".text")
    txt = "\n".join(out) + "\n"
    for n, l, *_ in ks:
        txt += kernel_text(n, l)
    if extra_pre or extra_post:
        txt += kernel_text("nop_kernel", ["  s_endpgm"])
    txt += '.section .rodata,"a"\n'
    for n, l, nv, acc, _ in ks:
        txt += kd_text(n, nv, acc)
    if extra_pre or extra_post:
        txt += kd_text("nop_kernel", 8, 8)
    return txt
if __name__ == "__main__":
    dst = sys.argv[1] if len(sys.argv) > 1 else f"cdna_kernels/{NAME}.s"
    pre = int(sys.argv[2]) if len(sys.argv) > 2 else 0
    post = int(sys.argv[3]) if len(sys.argv) > 3 else 0
    open(dst, "w").write(build(pre, post))
    print("wrote", dst)
```

```python
import sys
sys.path.insert(0, "bench")
def KD(name, nv=128):
    return f"""
.p2align 6
.amdhsa_kernel {name}
  .amdhsa_next_free_vgpr {nv}
  .amdhsa_next_free_sgpr 102
  .amdhsa_accum_offset {nv}
  .amdhsa_group_segment_fixed_size 0
  .amdhsa_kernarg_size 104
  .amdhsa_user_sgpr_count 2
  .amdhsa_user_sgpr_kernarg_segment_ptr 1
  .amdhsa_system_sgpr_workgroup_id_x 1
.end_amdhsa_kernel
"""
def kern(name, mode, depth, pattern):
    s = f"""
.globl {name}
.p2align 8
.type {name},@function
{name}:
  s_load_dwordx4 s[4:7], s[0:1], 0
  s_load_dwordx2 s[16:17], s[0:1], 16
  v_mov_b32 v100, v0
  s_waitcnt lgkmcnt(0)
  s_load_dwordx4 s[20:23], s[16:17], 0
  s_mov_b32 s8, s6
  s_mov_b32 s9, s7
  s_mov_b32 s10, 0x10000000
  s_mov_b32 s11, 0x20000
  v_lshrrev_b32 v1, 6, v0
  v_and_b32 v2, 63, v0
  s_nop 1
  v_readfirstlane_b32 s24, v1
  s_waitcnt lgkmcnt(0)
"""
    if pattern == 'lin':
        s += "  v_lshlrev_b32 v3, 4, v0\n"
    elif pattern == 'row128':
        s += "  v_lshrrev_b32 v3, 3, v0\n  v_lshlrev_b32 v3, 12, v3\n  v_and_b32 v4, 7, v0\n  v_lshlrev_b32 v4, 4, v4\n  v_add_u32 v3, v3, v4\n"
    elif pattern == 'row64':
        s += "  v_lshrrev_b32 v3, 2, v0\n  v_lshlrev_b32 v3, 12, v3\n  v_and_b32 v4, 3, v0\n  v_lshlrev_b32 v4, 4, v4\n  v_add_u32 v3, v3, v4\n"
    s += f"""
  s_mul_i32 s25, s2, s22
  s_lshl_b32 s26, s24, 10
  s_mov_b32 m0, s26
  s_barrier
  s_memtime s[12:13]
  s_waitcnt lgkmcnt(0)
.p2align 6
L_{name}:
"""
    for i in range(depth):
        s += f"  s_and_b32 s27, s25, s21\n"
        if mode == 'lds':
            s += f"  buffer_load_dwordx4 v3, s[8:11], s27 offen lds\n"
        else:
            s += f"  buffer_load_dwordx4 v[{8+4*(i%16)}:{11+4*(i%16)}], v3, s[8:11], s27 offen\n"
        s += f"  s_add_u32 s25, s25, s23\n"
        s += f"  s_waitcnt vmcnt({depth-1 if depth<=16 else 15})\n" if False else ""
    s += f"""  s_waitcnt vmcnt({depth//2})
  s_sub_u32 s20, s20, 1
  s_cmp_lg_u32 s20, 0
  s_cbranch_scc1 L_{name}
  s_waitcnt vmcnt(0)
  s_memtime s[14:15]
  s_waitcnt lgkmcnt(0)
  s_sub_u32 s14, s14, s12
  s_mov_b32 s8, s4
  s_mov_b32 s9, s5
  s_mov_b32 s10, 0x100000
  s_lshl_b32 s3, s2, 12
  v_lshlrev_b32 v101, 2, v100
  v_add_u32 v101, s3, v101
  v_mov_b32 v102, s14
  buffer_store_dword v102, v101, s[8:11], 0 offen
  s_waitcnt vmcnt(0)
  s_endpgm
"""
    return s, KD(name)
empty = """
.globl t_empty
.p2align 8
.type t_empty,@function
t_empty:
  s_endpgm
"""
tests = [(m, d, p) for m in ('lds', 'reg') for d in (8, 16) for p in ('lin', 'row128', 'row64')]
names = [f"t_{m}_{d}_{p}" for m, d, p in tests]
if __name__ == "__main__":
    if len(sys.argv) > 1 and sys.argv[1] == "gen":
        txt = '.amdgcn_target "amdgcn-amd-amdhsa--gfx950"\n.text\n' + empty
        kds = '.section .rodata,"a"\n' + KD("t_empty")
        for (m, d, p), n in zip(tests, names):
            s, kd = kern(n, m, d, p)
            txt += s; kds += kd
        open("mb2.s", "w").write(txt + kds)
    else:
        import mbhost as h, numpy as np
        import cdna_launch as cl
        co = h.build("mb2.s", names + ["t_empty"])
        m = h.Mod(co)
        buf = cl.DeviceBuffer(1 << 20)
        data = cl.DeviceBuffer(1 << 28)
        cl._hip.hipMemset(data._ptr, 1, 1 << 28)
        fe = m.fn("t_empty")
        ka0 = cl.pack_ptr_kernargs([buf.ptr] * 13)
        for n in (1, 2, 3, 4, 8, 16):
            def go():
                for i in range(n): h.launch(fe, (256, 1, 1), (512, 1, 1), ka0, 0)
            ts = h.timeit(go, 30)
            print("empty x", n, "median us", np.median(ts), "min", min(ts))
        for (md, d, p), n in zip(tests, names):
            f = m.fn(n)
            for blk in (256, 512):
                for foot, wgstride, lab in ((1 << 21, 65536 * 3, "2MB"), (1 << 25, 1 << 17, "32MB")):
                    total = 512 * 1024
                    per_iter = d * blk * 16
                    iters = total // per_iter
                    step = blk * 16 if p == 'lin' else (128 if p == 'row128' else 64)
                    if p != 'lin':
                        pass
                    par = cl.DeviceBuffer.from_numpy(np.array([iters, foot - 1, wgstride, step], dtype=np.uint32))
                    ka = cl.pack_ptr_kernargs([buf.ptr, data.ptr, par.ptr] + [buf.ptr] * 10)
                    for r in range(3):
                        h.launch(f, (256, 1, 1), (blk, 1, 1), ka, 65536); h.sync()
                    o = buf.to_numpy(np.uint32, (256, 1024))[:, :blk:64]
                    t = np.median(o.max(axis=1))
                    print(f"{n:20s} blk={blk} foot={lab}: {t:8.0f} cyc  {total/t:6.1f} B/clk/CU")
```

```python
import sys
sys.path.insert(0, "bench")
from mb2 import KD
def writer(name, fl):
    return f"""
.globl {name}
.p2align 8
.type {name},@function
{name}:
  s_load_dwordx4 s[4:7], s[0:1], 0
  v_lshlrev_b32 v1, 4, v0
  s_waitcnt lgkmcnt(0)
  s_mov_b32 s8, s6
  s_mov_b32 s9, s7
  s_mov_b32 s10, 0x10000000
  s_mov_b32 s11, 0x20000
  s_lshl_b32 s12, s2, 13
  buffer_store_dwordx4 v[0:3], v1, s[8:11], s12 offen {fl}
  s_add_u32 s12, s12, 4096
  buffer_store_dwordx4 v[0:3], v1, s[8:11], s12 offen {fl}
  s_endpgm
""", KD(name)
def reader(name, rot, depth):
    s = f"""
.globl {name}
.p2align 8
.type {name},@function
{name}:
  s_load_dwordx4 s[4:7], s[0:1], 0
  v_lshlrev_b32 v3, 4, v0
  s_waitcnt lgkmcnt(0)
  s_mov_b32 s8, s6
  s_mov_b32 s9, s7
  s_mov_b32 s10, 0x10000000
  s_mov_b32 s11, 0x20000
  s_lshr_b32 s20, s2, 5
  s_lshl_b32 s20, s20, 18
  s_bfe_u32 s21, s2, 0x20003
  s_mul_i32 s21, s21, {65536 if rot else 0}
  s_mov_b32 s23, {64 // depth}
  s_barrier
  s_memtime s[12:13]
  s_waitcnt lgkmcnt(0)
L_{name}:
"""
    for i in range(depth):
        s += f"  s_add_u32 s22, s20, s21\n  buffer_load_dwordx4 v[{8+4*i}:{11+4*i}], v3, s[8:11], s22 offen sc1\n  s_add_u32 s21, s21, 4096\n  s_and_b32 s21, s21, 0x3ffff\n"
    s += f"""  s_waitcnt vmcnt({depth//2})
  s_sub_u32 s23, s23, 1
  s_cmp_lg_u32 s23, 0
  s_cbranch_scc1 L_{name}
  s_waitcnt vmcnt(0)
  s_memtime s[14:15]
  s_waitcnt lgkmcnt(0)
  s_sub_u32 s14, s14, s12
  s_mov_b32 s8, s4
  s_mov_b32 s9, s5
  s_lshl_b32 s3, s2, 2
  v_mov_b32 v1, 0
  v_mov_b32 v2, s14
  buffer_store_dword v2, v1, s[8:11], s3 offen
  s_endpgm
"""
    return s, KD(name)
K = {"w_sc1": writer("w_sc1", "sc1"), "w_pl": writer("w_pl", ""), "w_nt": writer("w_nt", "nt"), "r0": reader("r0", 0, 16), "r1": reader("r1", 1, 16), "r0s": reader("r0s", 0, 8), "r1s": reader("r1s", 1, 8)}
if __name__ == "__main__":
    if len(sys.argv) > 1 and sys.argv[1] == "gen":
        open("mb16.s", "w").write('.amdgcn_target "amdgcn-amd-amdhsa--gfx950"\n.text\n' + "".join(v[0] for v in K.values()) + '.section .rodata,"a"\n' + "".join(v[1] for v in K.values()))
    else:
        import mbhost as h, numpy as np
        import cdna_launch as cl
        co = h.build("mb16.s", list(K)); m = h.Mod(co)
        buf = cl.DeviceBuffer(1 << 20); data = cl.DeviceBuffer(1 << 28); other = cl.DeviceBuffer(1 << 29)
        ka = cl.pack_ptr_kernargs([buf.ptr, data.ptr] + [buf.ptr] * 11)
        for w in ("w_sc1", "w_pl", "w_nt", None, "rep"):
            for r in ("r0", "r1", "r0s", "r1s"):
                ts = []
                for it in range(5):
                    if w != "rep": cl._hip.hipMemsetAsync(other._ptr, it, 1 << 29, None)
                    if w and w != "rep": h.launch(m.fn(w), (256, 1, 1), (256, 1, 1), ka, 0)
                    h.launch(m.fn(r), (256, 1, 1), (256, 1, 1), ka, 0); h.sync()
                    ts.append(np.median(buf.to_numpy(np.uint32, (256,))))
                print(f"writer {str(w):6s} reader {r:4s}: {np.median(ts):7.0f} cyc  {262144/np.median(ts):5.1f} B/clk/CU")
```

```python
import sys
sys.path.insert(0, "bench")
ITER = 400
UNR = 8
def kern(name, body, nv=128, acc=128):
    s = f"""
.globl {name}
.p2align 8
.type {name},@function
{name}:
  s_load_dwordx2 s[4:5], s[0:1], 0
  v_mov_b32 v100, v0
  s_mov_b32 s20, {ITER}
"""
    for i in range(0, 100):
        s += f"  v_mov_b32 v{i}, 0\n"
    s += "  s_waitcnt lgkmcnt(0)\n  s_barrier\n  s_memtime s[6:7]\n  s_waitcnt lgkmcnt(0)\n.p2align 6\n"
    s += f"L_{name}:\n"
    s += body * UNR
    s += f"""  s_sub_u32 s20, s20, 1
  s_cmp_lg_u32 s20, 0
  s_cbranch_scc1 L_{name}
  s_nop 15
  s_nop 15
  s_memtime s[8:9]
  s_waitcnt lgkmcnt(0)
  s_sub_u32 s8, s8, s6
  s_mov_b32 s12, s4
  s_mov_b32 s13, s5
  s_mov_b32 s14, 0x100000
  s_mov_b32 s15, 0x20000
  s_lshl_b32 s3, s2, 12
  v_lshlrev_b32 v101, 2, v100
  v_add_u32 v101, s3, v101
  v_mov_b32 v102, s8
  buffer_store_dword v102, v101, s[12:15], 0 offen
  s_waitcnt vmcnt(0)
  s_endpgm
"""
    kd = f"""
.p2align 6
.amdhsa_kernel {name}
  .amdhsa_next_free_vgpr {nv}
  .amdhsa_next_free_sgpr 102
  .amdhsa_accum_offset {acc}
  .amdhsa_group_segment_fixed_size 0
  .amdhsa_kernarg_size 104
  .amdhsa_user_sgpr_count 2
  .amdhsa_user_sgpr_kernarg_segment_ptr 1
  .amdhsa_system_sgpr_workgroup_id_x 1
.end_amdhsa_kernel
"""
    return s, kd

def exps(n, base=0, src=64):
    return [f"  v_exp_f32 v{base+i}, v{src+(i%16)}\n" for i in range(n)]
def cvts(n, base=16, src=64):
    return [f"  v_cvt_pk_bf16_f32 v{base+i}, v{src+(2*i)%16}, v{src+(2*i+1)%16}\n" for i in range(n)]
def fmas(n, base=0, src=64):
    return [f"  v_fma_f32 v{base+i}, v{src+(i%16)}, v{src+((i+1)%16)}, v{src+((i+2)%16)}\n" for i in range(n)]
def adds(n, base=0, src=64):
    return [f"  v_add_f32 v{base+i}, v{src+(i%16)}, v{src+((i+1)%16)}\n" for i in range(n)]
def pkfma(n, base=0, src=64):
    return [f"  v_pk_fma_f32 v[{base+2*i}:{base+2*i+1}], v[{src}:{src+1}], v[{src+2}:{src+3}], v[{src+4}:{src+5}]\n" for i in range(n)]
def pkmul(n, base=0, src=64):
    return [f"  v_pk_mul_f32 v[{base+2*i}:{base+2*i+1}], v[{src}:{src+1}], v[{src+2}:{src+3}]\n" for i in range(n)]
def mf32(n, accs=(32,48)):
    return [f"  v_mfma_f32_32x32x16_bf16 v[{accs[i%len(accs)]}:{accs[i%len(accs)]+15}], v[80:83], v[84:87], v[{accs[i%len(accs)]}:{accs[i%len(accs)]+15}]\n" for i in range(n)]
def mf32_8(n, accs=(32,48)):
    return [f"  v_mfma_f32_32x32x8bf16_1k v[{accs[i%len(accs)]}:{accs[i%len(accs)]+15}], v[80:81], v[84:85], v[{accs[i%len(accs)]}:{accs[i%len(accs)]+15}]\n" for i in range(n)]
def mf16(n, accs=(32,36,40,44,48,52,56,60)):
    return [f"  v_mfma_f32_16x16x32_bf16 v[{accs[i%len(accs)]}:{accs[i%len(accs)]+3}], v[80:83], v[84:87], v[{accs[i%len(accs)]}:{accs[i%len(accs)]+3}]\n" for i in range(n)]
def mf16_16(n, accs=(32,36,40,44,48,52,56,60)):
    return [f"  v_mfma_f32_16x16x16bf16_1k v[{accs[i%len(accs)]}:{accs[i%len(accs)]+3}], v[80:81], v[84:85], v[{accs[i%len(accs)]}:{accs[i%len(accs)]+3}]\n" for i in range(n)]
def exph(n, base=0, src=64):
    return [f"  v_exp_f16 v{base+i}, v{src+(i%16)}\n" for i in range(n)]
def perms(n, base=16, src=64):
    return [f"  v_perm_b32 v{base+i}, v{src+(2*i)%16}, v{src+(2*i+1)%16}, v90\n" for i in range(n)]

def interleave(m, v):
    out = []
    n = len(m)
    k = 0
    for i in range(n):
        out.append(m[i])
        e = (len(v) * (i + 1)) // n
        out += v[k:e]; k = e
    return out
def mixec(ne, nc):
    e = exps(ne); c = cvts(nc)
    out = []
    r = ne // nc
    for i in range(nc):
        out += e[i*r:(i+1)*r]; out.append(c[i])
    return out

tests = {
 "exp16": exps(16),
 "exph16": exph(16),
 "add16": adds(16),
 "fma16": fmas(16),
 "pkfma16": pkfma(16),
 "pkmul16": pkmul(16),
 "cvt16": cvts(16),
 "perm16": perms(16),
 "exp16cvt8": mixec(16, 8),
 "exp16add16": [x for p in zip(exps(16), adds(16, base=16)) for x in p],
 "mf32x4": mf32(4),
 "mf32k8x4": mf32_8(4),
 "mf16x8": mf16(8),
 "mf16k16x8": mf16_16(8),
 "mf32x4_e16c8": interleave(mf32(4), mixec(16, 8)),
 "mf16x8_e16c8": interleave(mf16(8), mixec(16, 8)),
 "mf32x4_e16": interleave(mf32(4), exps(16)),
 "mf32x4_e12": interleave(mf32(4), exps(12)),
 "mf32x4_a24": interleave(mf32(4), adds(24)),
 "mf32x4_a32": interleave(mf32(4), adds(32)),
 "mf32x5_e16c8": interleave(mf32(5), mixec(16, 8)),
 "mf32x6_e16c8": interleave(mf32(6), mixec(16, 8)),
}
if __name__ == "__main__":
    if len(sys.argv) > 1 and sys.argv[1] == "gen":
        txt = '.amdgcn_target "amdgcn-amd-amdhsa--gfx950"\n.text\n'
        kds = '.section .rodata,"a"\n'
        for k, b in tests.items():
            s, kd = kern("t_" + k, "".join(b))
            txt += s; kds += kd
        open("mb1.s", "w").write(txt + kds)
    else:
        import mbhost as h, numpy as np
        import cdna_launch as cl
        co = h.build("mb1.s", ["t_" + k for k in tests])
        m = h.Mod(co)
        buf = cl.DeviceBuffer(1 << 20)
        ka = cl.pack_ptr_kernargs([buf.ptr] * 13)
        for k in tests:
            f = m.fn("t_" + k)
            res = []
            for blk in (256, 512, 768, 1024):
                for r in range(2):
                    h.launch(f, (256, 1, 1), (blk, 1, 1), ka); h.sync()
                o = buf.to_numpy(np.uint32, (256, 1024))[:, :blk:64]
                w = blk // 256
                t = np.median(o.max(axis=1))/ITER/UNR
                res.append(f"{w}w: {t:7.1f} ({t/w:6.1f}/w)")
            print(f"{k:16s}", " | ".join(res))
```

```python
import sys
sys.path.insert(0, "bench")
from mb1 import exps, cvts, mf32, interleave, mixec, adds
ITER = 300
UNR = 8
def KD(name, nv=256):
    return f"""
.p2align 6
.amdhsa_kernel {name}
  .amdhsa_next_free_vgpr {nv}
  .amdhsa_next_free_sgpr 102
  .amdhsa_accum_offset 128
  .amdhsa_group_segment_fixed_size 0
  .amdhsa_kernarg_size 104
  .amdhsa_user_sgpr_count 2
  .amdhsa_user_sgpr_kernarg_segment_ptr 1
  .amdhsa_system_sgpr_workgroup_id_x 1
.end_amdhsa_kernel
"""
def kern(name, bodyA, bodyB=None, itB=None, prioA=0, prioB=0):
    s = f"""
.globl {name}
.p2align 8
.type {name},@function
{name}:
  s_load_dwordx4 s[4:7], s[0:1], 0
  v_mov_b32 v100, v0
  v_lshrrev_b32 v101, 8, v0
  s_mov_b32 s20, {ITER}
  v_readfirstlane_b32 s21, v101
  v_and_b32 v104, 63, v0
  v_lshlrev_b32 v104, 4, v104
  v_lshlrev_b32 v105, 4, v0
"""
    for i in range(0, 100):
        s += f"  v_mov_b32 v{i}, 0\n"
    s += """  s_waitcnt lgkmcnt(0)
  s_mov_b32 s24, s6
  s_mov_b32 s25, s7
  s_mov_b32 s26, 0x1000000
  s_mov_b32 s27, 0x20000
  s_mov_b32 m0, 0
  s_mov_b32 s30, 0
  s_barrier
  s_memtime s[6:7]
  s_waitcnt lgkmcnt(0)
"""
    if bodyB is not None:
        s += f"  s_cmp_lg_u32 s21, 0\n  s_cbranch_scc1 LB_{name}\n"
    s += f"  s_setprio {prioA}\n.p2align 6\nL_{name}:\n"
    s += bodyA * UNR
    s += f"""  s_sub_u32 s20, s20, 1
  s_cmp_lg_u32 s20, 0
  s_cbranch_scc1 L_{name}
"""
    if bodyB is not None:
        s += f"  s_branch LE_{name}\nLB_{name}:\n  s_setprio {prioB}\n  s_mov_b32 s20, {itB}\n.p2align 6\nLL_{name}:\n"
        s += bodyB * UNR
        s += f"""  s_sub_u32 s20, s20, 1
  s_cmp_lg_u32 s20, 0
  s_cbranch_scc1 LL_{name}
LE_{name}:
"""
    s += f"""  s_waitcnt vmcnt(0) lgkmcnt(0)
  s_nop 15
  s_nop 15
  s_memtime s[8:9]
  s_waitcnt lgkmcnt(0)
  s_sub_u32 s8, s8, s6
  s_mov_b32 s12, s4
  s_mov_b32 s13, s5
  s_mov_b32 s14, 0x100000
  s_mov_b32 s15, 0x20000
  s_lshl_b32 s3, s2, 12
  v_lshlrev_b32 v101, 2, v100
  v_add_u32 v101, s3, v101
  v_mov_b32 v102, s8
  buffer_store_dword v102, v101, s[12:15], 0 offen
  s_waitcnt vmcnt(0)
  s_endpgm
"""
    return s, KD(name)
def att(extra_per_group, nm=4):
    m = mf32(nm); v = mixec(16, 8)
    out = []
    per = 24 // 4
    base = interleave(m, v)
    res = []
    k = 0
    idx = [i for i, x in enumerate(base) if 'v_exp' in x]
    step = max(1, len(idx) // max(1, len(extra_per_group)))
    pos = {idx[min(len(idx)-1, j * step)]: [] for j in range(len(extra_per_group))}
    for j, e in enumerate(extra_per_group):
        pos[idx[min(len(idx)-1, j * step)]].append(e)
    for i, x in enumerate(base):
        res.append(x)
        res += pos.get(i, [])
    return "".join(res)
snop = "  s_nop 0\n"
sadd = "  s_add_u32 s30, s30, 1\n"
dsr = lambda r: f"  ds_read_b128 v[{r}:{r+3}], v104\n"
dma = "  buffer_load_dwordx4 v105, s[24:27], 0 offen lds\n"
def amf(n):
    return [f"  v_mfma_f32_32x32x16_bf16 a[{16*(i%8)}:{16*(i%8)+15}], v[80:83], v[84:87], a[{16*(i%8)}:{16*(i%8)+15}]\n" for i in range(n)]
helper_a = "".join(amf(8))
helper_b = "".join([dsr(4*i) for i in range(6)]) + "  s_waitcnt lgkmcnt(0)\n" + "".join(amf(8))
helper_c = "".join([dsr(4*i) for i in range(6)]) + dma*5 + sadd*5 + "  s_waitcnt lgkmcnt(0) vmcnt(20)\n" + "".join(amf(8))
def paced(n):
    return "".join([dsr(4*i) for i in range(6)]) + dma*5 + sadd*5 + "  s_waitcnt lgkmcnt(0) vmcnt(20)\n" + "".join(x + f"  s_sleep {n}\n" for x in amf(8))
A = att([])
tests = {
 "base": (A, None, None, 0, 0),
 "nop4": (att([snop]*4), None, None, 0, 0),
 "nop8": (att([snop]*8), None, None, 0, 0),
 "sadd8": (att([sadd]*8), None, None, 0, 0),
 "sadd16": (att([sadd]*16), None, None, 0, 0),
 "ds2": (att([dsr(88), dsr(92)]), None, None, 0, 0),
 "ds4": (att([dsr(88), dsr(92), dsr(88), dsr(92)]), None, None, 0, 0),
 "dma1": (att([dma, "  s_waitcnt vmcnt(20)\n"]), None, None, 0, 0),
 "dma2": (att([dma, dma, "  s_waitcnt vmcnt(20)\n"]), None, None, 0, 0),
 "m6mix": (att([dsr(88), dsr(92), dma, sadd, dma, sadd, sadd, "  s_waitcnt vmcnt(20) lgkmcnt(2)\n"], 6), None, None, 0, 0),
 "spec_a": (A, helper_a, ITER // 4, 0, 0),
 "spec_a_pA": (A, helper_a, ITER // 4, 1, 0),
 "spec_b": (A, helper_b, ITER // 4, 0, 0),
 "spec_b_pA": (A, helper_b, ITER // 4, 1, 0),
 "spec_c": (A, helper_c, ITER // 4, 0, 0),
 "spec_c_pA": (A, helper_c, ITER // 4, 1, 0),
 "spec_c_pB": (A, helper_c, ITER // 4, 0, 1),
 "spec_p1": (A, paced(1), ITER // 4, 0, 0),
 "spec_p1_pA": (A, paced(1), ITER // 4, 1, 0),
}
if __name__ == "__main__":
    if len(sys.argv) > 1 and sys.argv[1] == "gen":
        txt = '.amdgcn_target "amdgcn-amd-amdhsa--gfx950"\n.text\n'
        kds = '.section .rodata,"a"\n'
        for k, b in tests.items():
            s, kd = kern("t_" + k, *b)
            txt += s; kds += kd
        open("mb3.s", "w").write(txt + kds)
    else:
        import mbhost as h, numpy as np
        import cdna_launch as cl
        co = h.build("mb3.s", ["t_" + k for k in tests])
        m = h.Mod(co)
        buf = cl.DeviceBuffer(1 << 20)
        data = cl.DeviceBuffer(1 << 24)
        ka = cl.pack_ptr_kernargs([buf.ptr, data.ptr] + [buf.ptr] * 11)
        for k, b in tests.items():
            f = m.fn("t_" + k)
            blk = 256 if b[1] is None else 512
            for r in range(2):
                h.launch(f, (256, 1, 1), (blk, 1, 1), ka, 16384); h.sync()
            o = buf.to_numpy(np.uint32, (256, 1024))[:, :blk:64]
            ta = np.median(o[:, :4].max(axis=1)) / ITER / UNR
            tb = np.median(o[:, 4:].max(axis=1)) / ITER / UNR if blk == 512 else 0
            print(f"{k:16s} att per step {ta:7.1f}   helper finish (in att-step units) {tb:7.1f}")
```

```python
import sys
sys.path.insert(0, "bench")
from mb3 import KD
def kern(name, body, iters, nwave):
    s = f"""
.globl {name}
.p2align 8
.type {name},@function
{name}:
  s_load_dwordx4 s[4:7], s[0:1], 0
  v_mov_b32 v100, v0
  s_mov_b32 s20, {iters}
  v_lshlrev_b32 v104, 4, v0
  v_and_b32 v105, 63, v0
  v_lshlrev_b32 v105, 4, v105
  s_waitcnt lgkmcnt(0)
  s_mov_b32 s24, s6
  s_mov_b32 s25, s7
  s_mov_b32 s26, 0x1000000
  s_mov_b32 s27, 0x20000
"""
    for i in range(0, 96, 4):
        s += f"  buffer_load_dwordx4 v[{i}:{i+3}], v104, s[24:27], 0 offen offset:{(i*40)%4096 & ~15}\n"
    s += "  s_waitcnt vmcnt(0)\n"
    for i in range(16):
        s += f"  ds_write_b128 v105, v[{4*i}:{4*i+3}] offset:{1024*i}\n"
    for i in range(128):
        s += f"  v_accvgpr_write_b32 a{i}, 0\n"
    s += f"""  s_waitcnt lgkmcnt(0)
  s_barrier
  s_memtime s[6:7]
  s_memrealtime s[16:17]
  s_waitcnt lgkmcnt(0)
.p2align 6
L_{name}:
{body}
  s_sub_u32 s20, s20, 1
  s_cmp_lg_u32 s20, 0
  s_cbranch_scc1 L_{name}
  s_waitcnt vmcnt(0) lgkmcnt(0)
  s_memtime s[8:9]
  s_memrealtime s[18:19]
  s_waitcnt lgkmcnt(0)
  s_sub_u32 s8, s8, s6
  s_sub_u32 s9, s18, s16
  s_mov_b32 s12, s4
  s_mov_b32 s13, s5
  s_mov_b32 s14, 0x100000
  s_mov_b32 s15, 0x20000
  s_lshl_b32 s3, s2, 12
  v_lshlrev_b32 v101, 2, v100
  v_and_b32 v103, 1, v100
  v_mov_b32 v102, s8
  v_mov_b32 v106, s9
  v_cmp_eq_u32 vcc, 1, v103
  s_nop 1
  v_cndmask_b32 v102, v102, v106, vcc
  buffer_store_dword v102, v101, s[12:15], s3 offen
  s_waitcnt vmcnt(0)
  s_endpgm
"""
    return s, KD(name)
def m32(n, za=False):
    return [f"  v_mfma_f32_32x32x16_bf16 a[{16*(i%8)}:{16*(i%8)+15}], v[{4*((i//2)%4)}:{4*((i//2)%4)+3}], v[{16+4*(i%2)+8*((i//8)%2)}:{19+4*(i%2)+8*((i//8)%2)}], a[{16*(i%8)}:{16*(i%8)+15}]\n" for i in range(n)]
def m32k8(n):
    return [f"  v_mfma_f32_32x32x8_bf16 a[{16*(i%8)}:{16*(i%8)+15}], v[{4*((i//2)%4)}:{4*((i//2)%4)+1}], v[{16+4*(i%2)+8*((i//8)%2)}:{17+4*(i%2)+8*((i//8)%2)}], a[{16*(i%8)}:{16*(i%8)+15}]\n" for i in range(n)]
def m16(n):
    return [f"  v_mfma_f32_16x16x32_bf16 a[{4*(i%32)}:{4*(i%32)+3}], v[{4*((i//4)%8)}:{4*((i//4)%8)+3}], v[{32+4*(i%4)+16*((i//32)%2)}:{35+4*(i%4)+16*((i//32)%2)}], a[{4*(i%32)}:{4*(i%32)+3}]\n" for i in range(n)]
ex = lambda n: [f"  v_exp_f32 v{64+i%16}, v{80+(i*5)%16}\n" for i in range(n)]
cv = lambda n: [f"  v_cvt_pk_bf16_f32 v{64+i%16}, v{80+(2*i)%16}, v{81+(2*i)%16}\n" for i in range(n)]
fm = lambda n: [f"  v_pk_fma_f32 v[{64+2*(i%8)}:{65+2*(i%8)}], v[{80+2*(i%8)}:{81+2*(i%8)}], v[{82+2*(i%6)}:{83+2*(i%6)}], v[{84+2*(i%5)}:{85+2*(i%5)}]\n" for i in range(n)]
dr = lambda n: [f"  ds_read_b128 v[{48+4*(i%4)}:{51+4*(i%4)}], v105 offset:{1024*(i%16)}\n" for i in range(n)]
nop = lambda n: ["  s_nop 7\n"] * n
def il(a, b):
    out = []; k = 0
    for i, x in enumerate(a):
        out.append(x); e = len(b) * (i + 1) // len(a); out += b[k:e]; k = e
    return "".join(out)
T = 40000
zA = "  s_mov_b32 exec_lo, 0xffe00000\n  s_mov_b32 exec_hi, 0xffe00000\n" + "".join(f"  v_mov_b32 v{i}, 0\n" for i in range(16)) + "  s_mov_b64 exec, -1\n"
zB = "  s_mov_b32 exec_lo, 0xffe00000\n  s_mov_b32 exec_hi, 0xffe00000\n" + "".join(f"  v_mov_b32 v{i}, 0\n" for i in range(16, 32)) + "  s_mov_b64 exec, -1\n"
zKA = "  s_mov_b32 exec_lo, 0\n" + "".join(f"  v_mov_b32 v{i}, 0\n" for i in range(16)) + "  s_mov_b64 exec, -1\n"
zKB = "  s_mov_b32 exec_lo, 0\n" + "".join(f"  v_mov_b32 v{i}, 0\n" for i in range(16, 32)) + "  s_mov_b64 exec, -1\n"
pos = "".join(f"  v_and_b32 v{i}, 0x7fff7fff, v{i}\n" for i in range(16, 32))
PRE = {"m32 zeroA": zA, "m32 zeroB": zB, "k8 halfK zeroA": zKA, "k8 halfK zeroB": zKB, "k16 halfK zeroB": zKB, "m32 posB": pos, "m32 posB zeroA": pos + zA}
tests = {
 "m32 100%": ("".join(m32(16)), T // 512, 16),
 "m32 zeroA": ("".join(m32(16)), T // 512, 16),
 "m32 zeroB": ("".join(m32(16)), T // 512, 16),
 "m32 posB": ("".join(m32(16)), T // 512, 16),
 "m32 posB zeroA": ("".join(m32(16)), T // 512, 16),
 "m32k8 100%": ("".join(m32k8(16)), T // 512, 16),
 "k8 halfK zeroA": ("".join(m32k8(16)), T // 512, 16),
 "k8 halfK zeroB": ("".join(m32k8(16)), T // 512, 16),
 "k16 halfK zeroB": ("".join(m32(16)), T // 512, 16),
}
names = {k: f"t_{i}" for i, k in enumerate(tests)}
if __name__ == "__main__":
    if len(sys.argv) > 1 and sys.argv[1] == "gen":
        txt = '.amdgcn_target "amdgcn-amd-amdhsa--gfx950"\n.text\n'
        kds = '.section .rodata,"a"\n'
        for k, (b, it, n) in tests.items():
            s, kd = kern(names[k], b, it, 4); s = s.replace('  s_barrier\n', PRE.get(k, '') + '  s_barrier\n', 1); txt += s; kds += kd
        open("mb8b.s", "w").write(txt + kds)
    else:
        import mbhost as h, numpy as np, torch
        import cdna_launch as cl
        co = h.build("mb8b.s", list(names.values()))
        m = h.Mod(co)
        buf = cl.DeviceBuffer(1 << 20); big = cl.DeviceBuffer(1 << 28)
        rnd = cl.DeviceBuffer.from_numpy(torch.randn(1 << 23).to(torch.bfloat16).view(torch.uint16).numpy())
        zer = cl.DeviceBuffer.from_numpy(np.zeros(1 << 23, dtype=np.uint16))
        for k, (b, it, n) in tests.items():
            line = f"{k:12s}"
            for lab, d, pre in (("rand+memset", rnd, 1), ("rand idle", rnd, 0)):
                ka = cl.pack_ptr_kernargs([buf.ptr, d.ptr] + [buf.ptr] * 11)
                res = []
                for r in range(4):
                    if pre: cl._hip.hipMemsetAsync(big._ptr, r, 1 << 28, None)
                    else: h.sync()
                    h.launch(m.fn(names[k]), (256, 1, 1), (256, 1, 1), ka, 16384); h.sync()
                    o = buf.to_numpy(np.uint32, (256, 1024))
                    res.append((np.median(o[:, 0]), np.median(o[:, 1]) / 100.0))
                c, u = res[-1]
                line += f" | {lab}: {c:6.0f}cyc {u:6.2f}us {c/u/1000:.2f}GHz {u*1000/(it*n):6.2f}ns/op"
            print(line)
```

```python
import sys
sys.path.insert(0, "bench")
from mb3 import KD
N = 24
def chain(pk, dst, pad=""):
    P = lambda r: f"v[{r}:{r+1}]"
    mul = "".join(f"  v_mul_f32 v{dst+r}, v{96+r}, v72\n" for r in range(N))
    ex = "".join(f"  v_exp_f32 v{dst+r}, v{dst+r}\n" for r in range(N))
    rc = "".join(f"  v_rcp_f32 v{dst+r}, v{dst+r}\n" for r in range(N))
    mov = "".join(f"  v_mov_b32 v{dst+r}, v{dst+r}\n" for r in range(N))
    add = "".join(f"  v_add_f32 v{dst+r}, v{dst+r}, v73\n" for r in range(N))
    pa = "".join(f"  v_pk_add_f32 {P(dst+r)}, {P(dst+r)}, v[72:73] op_sel:[0,1] op_sel_hi:[1,1]\n" for r in range(0, N, 2))
    pan = "".join(f"  v_pk_add_f32 {P(dst+r)}, {P(dst+r)}, v[70:71]\n" for r in range(0, N, 2))
    pal = "".join(f"  v_pk_add_f32 {P(dst+r)}, {P(dst+r)}, v[70:71] op_sel_hi:[1,0]\n" for r in range(0, N, 2))
    pf = "".join(f"  v_pk_fma_f32 {P(dst+r)}, {P(dst+r)}, v[70:71], v[70:71]\n" for r in range(0, N, 2))
    pfs = "".join(f"  v_pk_fma_f32 {P(dst+r)}, {P(dst+r)}, v[72:73], v[72:73] op_sel:[0,1,1] op_sel_hi:[1,1,1]\n" for r in range(0, N, 2))
    fin = "".join(f"  v_mul_f32 v{dst+r}, v{dst+r}, v{96+r}\n" for r in range(N))
    np_ = "  s_nop 15\n  s_nop 15\n"
    notr = pk.startswith("n")
    if pad:
        return mul + pad + ("" if notr else ex) + pad + add + pad + ("" if notr else rc) + pad + fin
    mid = {"a": pa, "A": pan, "l": pal, "f": pf, "F": pfs}[pk[-1]]
    if notr: return mul + mid + fin
    return mul + ex + (np_ if "b" in pk else mov if "m" in pk else "") + mid + (np_ if "c" in pk else mov if "M" in pk else "") + rc + fin
def kern(name, pk, prio, partner):
    s = f"""
.globl {name}
.p2align 8
.type {name},@function
{name}:
  s_load_dwordx4 s[4:7], s[0:1], 0
  v_lshrrev_b32 v20, 6, v0
  v_mov_b32 v127, v0
  s_waitcnt lgkmcnt(0)
  v_readfirstlane_b32 s22, v20
  s_mov_b32 s8, s4
  s_mov_b32 s9, s5
  s_mov_b32 s10, 0x100000
  s_mov_b32 s11, 0x20000
  v_mov_b32 v126, 0
  s_mov_b32 s21, 0
  s_cmp_lt_u32 s22, 4
  s_cbranch_scc1 LB_{name}
  s_setprio {prio}
  v_mov_b32 v72, 0xbfb8aa3b
  v_mov_b32 v73, 1.0
  v_mov_b32 v70, 1.0
  v_mov_b32 v71, 1.0
  v_cvt_f32_u32 v74, v0
""" + "".join(f"  v_fma_f32 v{96+r}, v74, 0.5, -4.0\n  v_mul_f32 v{96+r}, {'-' if r & 1 else ''}0.5, v{96+r}\n  v_add_f32 v{96+r}, {r % 5}.0 , v{96+r}\n".replace("0.0 ,", "0 ,").replace("3.0 ,", "2.0 ,") for r in range(N)) + chain(pk, 32, "  s_nop 15\n") + f"""  s_nop 15
L_{name}:
""" + chain(pk, 0) + "".join(f"  v_xor_b32 v{r}, v{r}, v{32+r}\n  v_or_b32 v125, v125, v{r}\n".replace("v_or_b32 v125, v125, v0", "v_mov_b32 v125, v0") for r in range(N)) + f"""  v_cmp_ne_u32 vcc, 0, v125
  s_nop 1
  v_cndmask_b32 v124, 0, 1, vcc
  v_add_u32 v126, v126, v124
  s_sleep 1
  s_add_u32 s21, s21, 1
  s_cmp_lt_u32 s21, 20000
  s_cbranch_scc1 L_{name}
  s_branch LE_{name}
LB_{name}:
"""
    body = ""
    for k in range(4):
        if 'm' in partner: body += f"  v_mfma_f32_32x32x16_bf16 a[{16*(k%2)}:{15+16*(k%2)}], v[40:43], v[44:47], a[{16*(k%2)}:{15+16*(k%2)}]\n"
        if 'e' in partner: body += "".join(f"  v_exp_f32 v{48+i}, v{56+i}\n" for i in range(3 if k < 3 else 7))
    if 'e' in partner: body += "".join(f"  v_cvt_pk_bf16_f32 v{48+i}, v56, v57\n" for i in range(8))
    s += f"LL_{name}:\n" + body * 4 + f"""  s_add_u32 s21, s21, 1
  s_cmp_lt_u32 s21, 30000
  s_cbranch_scc1 LL_{name}
LE_{name}:
  s_lshl_b32 s3, s2, 11
  v_lshlrev_b32 v10, 2, v127
  buffer_store_dword v126, v10, s[8:11], s3 offen
  s_waitcnt vmcnt(0)
  s_endpgm
"""
    return s, KD(name)
tests = [(pk, pr, 'me') for pk in ('a', 'A', 'l', 'f', 'F', 'ba', 'ca', 'bca', 'ma', 'Ma', 'na', 'nA', 'nF') for pr in (0, 1)]
names = [f"t_{a}_{b}_{c}" for a, b, c in tests]
if __name__ == "__main__":
    if len(sys.argv) > 1 and sys.argv[1] == "gen":
        txt = '.amdgcn_target "amdgcn-amd-amdhsa--gfx950"\n.text\n'; kds = '.section .rodata,"a"\n'
        for t, n in zip(tests, names):
            s, kd = kern(n, *t); txt += s; kds += kd
        open("sem5.s", "w").write(txt + kds)
    else:
        import mbhost as h, numpy as np
        import cdna_launch as cl
        co = h.build("sem5.s", names); m = h.Mod(co)
        buf = cl.DeviceBuffer(1 << 20)
        ka = cl.pack_ptr_kernargs([buf.ptr] * 13)
        for n in names:
            h.launch(m.fn(n), (256, 1, 1), (512, 1, 1), ka, 0); h.sync()
            o = buf.to_numpy(np.uint32, (256, 8, 64))[:, 4:]
            print(n, "bad lane-iterations:", o.sum(), "by quarter", o.reshape(256, 4, 4, 16).sum(axis=(0, 1, 3)).tolist())
```
